```python
import torch

def _softmax(x, axis=-1):
    return torch.softmax(x, dim=axis)

def _gelu(x):
    return torch.nn.functional.gelu(x, approximate='tanh')

def _silu(x):
    return torch.nn.functional.silu(x)

def _sigmoid(x):
    return torch.sigmoid(x)

def _layernorm(x, axis=-1, eps=1e-05):
    m = x.mean(dim=axis, keepdim=True)
    v = x.var(dim=axis, keepdim=True, unbiased=False)
    return (x - m) / torch.sqrt(v + eps)

def _scatter_add(tgt, idx, src, axis=0):
    return tgt.clone().index_add_(axis, idx, src)

def _segment_sum(src, seg, n):
    out = torch.zeros((n,) + src.shape[1:], dtype=src.dtype)
    return out.index_add_(0, seg, src)

def _pad(x, pw):
    flat = tuple((v for pair in reversed(pw) for v in pair))
    return torch.nn.functional.pad(x, flat)
kernel_name = 'standalone__tree_speculative_verify_tree_attention_over_candidate_token_tree__sampling'

def setup_inputs():

    _w = lambda a: (lambda t: t.to(torch.bfloat16) if t.is_floating_point() else t)(torch.as_tensor(a))
    B, Hq, Hkv, T, C, D = (16, 32, 4, 1, 4096, 128)
    tree_mask = torch.zeros((B, T, T), dtype=float)
    for b in range(B):
        parent = torch.zeros(T, dtype=torch.int64)
        for i in range(1, T):
            parent[i] = int(torch.randint(0, i, (1,)).item())
        for i in range(T):
            j = i
            tree_mask[b, i, j] = 1.0
            while j > 0:
                j = parent[j]
                tree_mask[b, i, j] = 1.0
    return {'q': _w((lambda *s: torch.randn(*s, dtype=torch.bfloat16) * 0.8)(B, Hq, T, D)), 'k_cache': _w((lambda *s: torch.randn(*s, dtype=torch.bfloat16) * 0.8)(B, Hkv, C, D)), 'v_cache': _w((lambda *s: torch.randn(*s, dtype=torch.bfloat16) * 0.05)(B, Hkv, C, D)), 'k_tree': _w((lambda *s: torch.randn(*s, dtype=torch.bfloat16) * 0.8)(B, Hkv, T, D)), 'v_tree': _w((lambda *s: torch.randn(*s, dtype=torch.bfloat16) * 0.05)(B, Hkv, T, D)), 'tree_mask': _w(tree_mask)}

def reference(q, k_cache, v_cache, k_tree, v_tree, tree_mask):
    B, Hq, T, D = q.shape
    Hkv, C = (k_cache.shape[1], k_cache.shape[2])
    rep = Hq // Hkv
    kc = (lambda x, n, axis: torch.repeat_interleave(x, n, dim=axis))(k_cache, rep, axis=1)
    vc = (lambda x, n, axis: torch.repeat_interleave(x, n, dim=axis))(v_cache, rep, axis=1)
    kt = (lambda x, n, axis: torch.repeat_interleave(x, n, dim=axis))(k_tree, rep, axis=1)
    vt = (lambda x, n, axis: torch.repeat_interleave(x, n, dim=axis))(v_tree, rep, axis=1)
    k = torch.concatenate([kc, kt], axis=2)
    v = torch.concatenate([vc, vt], axis=2)
    scale = D ** (-0.5)
    scores = torch.einsum('bhqd,bhkd->bhqk', q, k) * scale
    ctx_mask = torch.ones((B, 1, T, C), dtype=scores.dtype)
    tm = tree_mask[:, None, :, :].clone()
    full_mask = torch.concatenate([ctx_mask, tm], axis=-1)
    scores = scores + (1.0 - full_mask) * -1000000000.0
    p = _softmax(scores, axis=-1)
    return torch.einsum('bhqk,bhkd->bhqd', p, v)
```

```python
import sys, math
NAME = "standalone__tree_speculative_verify_tree_attention_over_candidate_token_tree__sampling"

def gen(nt=True, mapmode=0, stamps=False):
    L = []
    A = L.append
    NT = " nt" if nt else ""
    hdr = open("cdna_kernels/%s.s.ref" % NAME).read().split("\n")
    for h in hdr:
        if h.startswith("; @launch") or h.startswith("; Override") or h.startswith("; grid=ceil"):
            continue
        if h.startswith(";"):
            A(h)
        else:
            break
    A("; @launch grid=(256,1,1) block=(512,1,1) lds=34816")
    A('.amdgcn_target "amdgcn-amd-amdhsa--gfx950"')
    A(".text")
    A(".globl %s_kernel" % NAME)
    A(".p2align 8")
    A(".type %s_kernel,@function" % NAME)
    A("%s_kernel:" % NAME)
    A("  s_cmp_ge_u32 s2, 256")
    A("  s_cbranch_scc1 L_end")
    A("  s_load_dwordx16 s[4:19], s[0:1], 0")
    A("  s_load_dwordx2 s[20:21], s[0:1], 64")
    A("  v_lshrrev_b32 v1, 6, v0")
    A("  v_and_b32 v0, 63, v0")
    A("  v_readfirstlane_b32 s3, v1")
    if mapmode == 0:
        A("  s_lshr_b32 s22, s2, 2")
        A("  s_and_b32 s23, s2, 3")
    else:
        A("  s_and_b32 s22, s2, 63")
        A("  s_lshr_b32 s23, s2, 6")
    A("  v_and_b32 v4, 3, v0")
    A("  v_bfe_u32 v5, v0, 2, 2")
    A("  v_lshrrev_b32 v6, 4, v0")
    A("  v_lshlrev_b32 v4, 10, v4")
    A("  v_lshl_add_u32 v4, v5, 8, v4")
    A("  v_lshl_add_u32 v1, v6, 4, v4")
    A("  v_lshlrev_b32 v2, 4, v0")
    A("  v_and_b32 v4, 7, v0")
    A("  v_lshlrev_b32 v4, 8, v4")
    A("  v_lshl_add_u32 v3, v6, 4, v4")
    A("  s_lshl_b32 s56, s22, 20")
    A("  s_lshl_b32 s57, s23, 18")
    A("  s_lshl_b32 s58, s3, 15")
    A("  s_add_u32 s56, s56, s57")
    A("  s_add_u32 s56, s56, s58")
    for k in range(8):
        A("  s_movk_i32 s%d, %d" % (44 + k, 4096 * k))
    A("  s_mov_b32 s26, 0x8000")
    A("  s_mov_b32 s27, 0x20000")
    A("  s_mov_b32 s30, 0x8000")
    A("  s_mov_b32 s31, 0x20000")
    A("  s_lshl_b32 s57, s22, 11")
    A("  s_movk_i32 s34, 2048")
    A("  s_mov_b32 s35, 0x20000")
    A("  s_or_b32 s52, s23, s3")
    A("  s_waitcnt lgkmcnt(0)")
    A("  s_add_u32 s24, s6, s56")
    A("  s_addc_u32 s25, s7, 0")
    KB, VB = 64, 192
    def kload(t):
        for u in range(2):
            for j in range(4):
                r = KB + 32 * t + 16 * u + 4 * j
                A("  buffer_load_dwordx4 v[%d:%d], v1, s[24:27], s%d offen offset:%d%s" % (r, r + 3, 44 + 2 * t + u, 64 * j, NT))
    def vreg(t):
        return [192, 224, 64, 96][t]
    def vload(t):
        for i in range(8):
            r = vreg(t) + 4 * i
            A("  buffer_load_dwordx4 v[%d:%d], v2, s[28:31], s%d offen offset:%d%s" % (r, r + 3, 44 + 2 * t + (i >> 2), 1024 * (i & 3), NT))
    kload(0)
    A("  s_add_u32 s32, s4, s57")
    A("  s_addc_u32 s33, s5, 0")
    A("  s_add_u32 s28, s8, s56")
    A("  s_addc_u32 s29, s9, 0")
    for j in range(4):
        A("  buffer_load_dwordx4 v[%d:%d], v3, s[32:35], 0 offen offset:%d" % (8 + 4 * j, 11 + 4 * j, 64 * j))
    A("  s_cmp_lg_u32 s52, 0")
    A("  s_cbranch_scc1 L_notree1")
    A("  s_lshl_b32 s57, s22, 8")
    A("  s_add_u32 s36, s10, s57")
    A("  s_addc_u32 s37, s11, 0")
    A("  s_movk_i32 s38, 256")
    A("  s_mov_b32 s39, 0x20000")
    A("  s_add_u32 s40, s12, s57")
    A("  s_addc_u32 s41, s13, 0")
    A("  s_movk_i32 s42, 256")
    A("  s_mov_b32 s43, 0x20000")
    A("  s_lshr_b32 s58, s22, 2")
    A("  s_lshl_b32 s59, s58, 1")
    A("  s_and_b32 s59, s59, 0xfffffffc")
    A("  s_load_dword s60, s[14:15], s59")
    A("  v_lshlrev_b32 v4, 4, v6")
    A("  v_and_b32 v5, 15, v0")
    A("  v_lshlrev_b32 v5, 4, v5")
    for j in range(4):
        A("  buffer_load_dwordx4 v[%d:%d], v4, s[36:39], 0 offen offset:%d" % (40 + 4 * j, 43 + 4 * j, 64 * j))
    A("  buffer_load_dwordx4 v[60:63], v5, s[40:43], 0 offen")
    A("L_notree1:")
    kload(1); kload(2); kload(3)
    vload(0); vload(1)
    c = (128 ** -0.5) * math.log2(math.e)
    import struct
    f2u = lambda f: struct.unpack("<I", struct.pack("<f", f))[0]
    A("  s_mov_b32 s53, 0x%08x" % f2u(c))
    A("  s_mov_b32 s54, 0x05040100")
    A("  s_mov_b32 s55, 0x07060302")
    A("  v_mov_b32 v7, 0xff800000")
    def qk(t):
        for j in range(4):
            for u in range(2):
                d = 24 + 8 * t + 4 * u
                a = KB + 32 * t + 16 * u + 4 * j
                cc = "0" if j == 0 else "v[%d:%d]" % (d, d + 3)
                A("  v_mfma_f32_16x16x32_bf16 v[%d:%d], v[%d:%d], v[%d:%d], %s" % (d, d + 3, a, a + 3, 8 + 4 * j, 11 + 4 * j, cc))
    A("  s_waitcnt vmcnt(40)")
    A("  s_cmp_lg_u32 s52, 0")
    A("  s_cbranch_scc1 L_notree2")
    for j in range(4):
        cc = "0" if j == 0 else "v[56:59]"
        A("  v_mfma_f32_16x16x32_bf16 v[56:59], v[%d:%d], v[%d:%d], %s" % (40 + 4 * j, 43 + 4 * j, 8 + 4 * j, 11 + 4 * j, cc))
    A("  s_waitcnt lgkmcnt(0)")
    A("  s_and_b32 s58, s58, 1")
    A("  s_lshl_b32 s58, s58, 4")
    A("  s_lshr_b32 s60, s60, s58")
    A("  s_lshl_b32 s60, s60, 16")
    A("  v_sub_f32 v4, 1.0, s60")
    A("  s_mov_b32 s61, 0x%08x" % f2u(-1e9 * math.log2(math.e)))
    A("  v_mul_f32 v4, s61, v4")
    A("  s_nop 4")
    A("  v_fma_f32 v7, v56, s53, v4")
    A("L_notree2:")
    qk(0); vload(2)
    A("  s_waitcnt vmcnt(40)")
    qk(1); vload(3)
    A("  s_waitcnt vmcnt(40)")
    qk(2)
    A("  s_waitcnt vmcnt(32)")
    qk(3)
    A("  v_max3_f32 v4, v24, v25, v26")
    for i in range(27, 47, 2):
        A("  v_max3_f32 v4, v4, v%d, v%d" % (i, i + 1))
    A("  v_max3_f32 v4, v4, v47, v48")
    for i in range(49, 55, 2):
        A("  v_max3_f32 v4, v4, v%d, v%d" % (i, i + 1))
    A("  v_max_f32 v4, v4, v55")
    A("  v_mul_f32 v4, s53, v4")
    A("  v_max_f32 v4, v4, v7")
    A("  v_mov_b32 v5, v4")
    A("  v_and_b32 v1, 15, v0")
    A("  v_lshlrev_b32 v1, 5, v1")
    A("  v_permlane32_swap_b32 v4, v5")
    A("  v_max_f32 v4, v4, v5")
    A("  v_mov_b32 v5, v4")
    A("  s_lshl_b32 s58, s3, 2")
    A("  v_add_u32 v3, s58, v1")
    A("  v_permlane16_swap_b32 v4, v5")
    A("  v_max_f32 v4, v4, v5")
    A("  ds_write_b32 v3, v4 offset:32768")
    A("  s_waitcnt lgkmcnt(0)")
    A("  s_barrier")
    A("  ds_read_b128 v[8:11], v1 offset:32768")
    A("  ds_read_b128 v[12:15], v1 offset:32784")
    ACC, VT = 128, 160
    for i in range(32):
        A("  v_mov_b32 v%d, 0" % (ACC + i))
    A("  s_waitcnt lgkmcnt(0)")
    A("  v_max3_f32 v4, v8, v9, v10")
    A("  v_max3_f32 v4, v4, v11, v12")
    A("  v_max3_f32 v4, v4, v13, v14")
    A("  v_max_f32 v4, v4, v15")
    A("  v_sub_f32 v7, v7, v4")
    A("  v_exp_f32 v7, v7")
    for i in range(32):
        A("  v_fma_f32 v%d, v%d, s53, -v4" % (24 + i, 24 + i))
    A("  v_mul_f32 v5, 0.25, v7" if False else "  v_mul_f32 v5, 0x3e800000, v7")
    for i in range(32):
        A("  v_exp_f32 v%d, v%d" % (24 + i, 24 + i))
    for i in range(32):
        A("  v_add_f32 v5, v5, v%d" % (24 + i))
    for m in range(16):
        A("  v_cvt_pk_bf16_f32 v%d, v%d, v%d" % (8 + m, 24 + 2 * m, 25 + 2 * m))
    A("  s_cmp_lg_u32 s52, 0")
    A("  s_cbranch_scc1 L_notree3")
    A("  v_cmp_gt_u32 vcc, 16, v0")
    A("  v_mov_b32 v24, 0")
    A("  v_mov_b32 v25, 0")
    A("  v_cndmask_b32 v7, 0, v7, vcc")
    A("  v_cvt_pk_bf16_f32 v32, v7, v24")
    A("  v_cvt_pk_bf16_f32 v33, v24, v7")
    for e in range(8):
        q = 40 + 4 * (e & 1)
        for m in range(4):
            A("  v_mov_b32 v%d, %s" % (q + m, ("v%d" % (32 + (e & 1))) if m == (e >> 1) else "0"))
        A("  s_nop 1")
        A("  v_mfma_f32_16x16x32_bf16 v[%d:%d], v[60:63], v[%d:%d], 0" % (ACC + 4 * e, ACC + 4 * e + 3, q, q + 3))
    A("L_notree3:")
    A("  v_mov_b32 v6, v5")
    A("  s_nop 1")
    A("  v_permlane32_swap_b32 v5, v6")
    A("  v_add_f32 v5, v5, v6")
    A("  v_mov_b32 v6, v5")
    A("  s_nop 1")
    A("  v_permlane16_swap_b32 v5, v6")
    A("  v_add_f32 v5, v5, v6")
    A("  ds_write_b32 v3, v5 offset:33280")
    A("  v_lshrrev_b32 v6, 4, v0")
    A("  v_and_b32 v2, 7, v0")
    A("  v_lshlrev_b32 v2, 4, v2")
    A("  v_lshl_add_u32 v2, v6, 7, v2")
    A("  s_lshl_b32 s58, s3, 12")
    A("  v_add_u32 v2, s58, v2")
    def pv(t):
        vr = vreg(t)
        for m in range(4):
            A("  s_waitcnt vmcnt(%d)" % (8 * (3 - t) + 6 - 2 * m))
            for e in range(8):
                A("  v_perm_b32 v%d, v%d, v%d, s%d" % (VT + 4 * e + m, vr + 4 * (2 * m + 1) + (e >> 1), vr + 4 * (2 * m) + (e >> 1), 54 + (e & 1)))
        if True:
            A("  s_nop 0")
        for e in range(8):
            A("  v_mfma_f32_16x16x32_bf16 v[%d:%d], v[%d:%d], v[%d:%d], v[%d:%d]" % (ACC + 4 * e, ACC + 4 * e + 3, VT + 4 * e, VT + 4 * e + 3, 8 + 4 * t, 11 + 4 * t, ACC + 4 * e, ACC + 4 * e + 3))
    for t in range(4):
        pv(t)
    A("  v_and_b32 v6, 8, v0")
    A("  v_cmp_eq_u32 vcc, 0, v6")
    A("  s_and_saveexec_b64 s[62:63], vcc")
    A("  s_nop 4")
    for e in range(8):
        if e == 7:
            A("  s_nop 2")
        A("  ds_write_b128 v2, v[%d:%d] offset:%d" % (ACC + 4 * e, ACC + 4 * e + 3, 512 * e))
    A("  s_mov_b64 exec, s[62:63]")
    A("  s_waitcnt lgkmcnt(0)")
    A("  s_barrier")
    A("  s_cmp_ge_u32 s3, 4")
    A("  s_cbranch_scc1 L_end")
    A("  s_lshl_b32 s58, s3, 10")
    A("  v_lshlrev_b32 v2, 4, v0")
    A("  v_add_u32 v2, s58, v2")
    A("  v_and_b32 v1, 7, v0")
    A("  v_lshlrev_b32 v3, 5, v1")
    for w in range(8):
        A("  ds_read_b128 v[%d:%d], v2 offset:%d" % (24 + 4 * w, 27 + 4 * w, 4096 * w))
    A("  ds_read_b128 v[8:11], v3 offset:33280")
    A("  ds_read_b128 v[12:15], v3 offset:33296")
    A("  ds_read_b128 v[16:19], v3 offset:32768")
    A("  ds_read_b128 v[20:23], v3 offset:32784")
    A("  s_lshl_b32 s56, s22, 15")
    A("  s_add_u32 s24, s20, s56")
    A("  s_addc_u32 s25, s21, 0")
    A("  s_mov_b32 s26, 0x8000")
    A("  s_mov_b32 s27, 0x20000")
    A("  s_lshl_b32 s57, s23, 13")
    A("  s_mov_b32 s28, s18")
    A("  s_mov_b32 s29, s19")
    A("  s_movk_i32 s30, 256")
    A("  s_mov_b32 s31, 0x20000")
    A("  s_lshl_b32 s56, s22, 11")
    A("  s_add_u32 s32, s16, s56")
    A("  s_addc_u32 s33, s17, 0")
    A("  s_movk_i32 s34, 2048")
    A("  s_mov_b32 s35, 0x20000")
    for w in range(1, 8):
        A("  s_waitcnt lgkmcnt(%d)" % (11 - w))
        for r in range(4):
            A("  v_add_f32 v%d, v%d, v%d" % (24 + r, 24 + r, 24 + 4 * w + r))
    A("  buffer_store_dwordx4 v[24:27], v2, s[24:27], s57 offen sc1")
    A("  s_waitcnt lgkmcnt(0)")
    A("  v_add_f32 v9, v8, v9")
    for i in range(10, 16):
        A("  v_add_f32 v9, v9, v%d" % i)
    A("  v_max3_f32 v8, v16, v17, v18")
    A("  v_max3_f32 v8, v8, v19, v20")
    A("  v_max3_f32 v8, v8, v21, v22")
    A("  v_max_f32 v8, v8, v23")
    A("  v_lshlrev_b32 v3, 3, v1")
    A("  v_add_u32 v3, 4096, v3")
    A("  s_cmp_lg_u32 s3, 0")
    A("  s_cbranch_scc1 L_nostat")
    A("  v_cmp_gt_u32 vcc, 8, v0")
    A("  s_and_saveexec_b64 s[62:63], vcc")
    A("  buffer_store_dwordx2 v[8:9], v3, s[24:27], s57 offen sc1")
    A("  s_mov_b64 exec, s[62:63]")
    A("L_nostat:")
    A("  s_waitcnt vmcnt(0)")
    A("  s_barrier")
    A("  v_mov_b32 v10, 0")
    A("  s_cmp_lg_u32 s3, 0")
    A("  s_cbranch_scc1 L_noatom")
    A("  v_cmp_eq_u32 vcc, 0, v0")
    A("  s_and_saveexec_b64 s[62:63], vcc")
    A("  v_mov_b32 v11, 1")
    A("  s_lshl_b32 s56, s22, 2")
    A("  buffer_atomic_add v11, v10, s[28:31], s56 offen sc0")
    A("  s_waitcnt vmcnt(0)")
    A("  ds_write_b32 v10, v11 offset:33792")
    A("  s_waitcnt lgkmcnt(0)")
    A("  s_mov_b64 exec, s[62:63]")
    A("L_noatom:")
    A("  s_barrier")
    A("  ds_read_b32 v11, v10 offset:33792")
    A("  s_waitcnt lgkmcnt(0)")
    A("  v_readfirstlane_b32 s56, v11")
    A("  s_cmp_lg_u32 s56, 3")
    A("  s_cbranch_scc1 L_end")
    for s in range(4):
        A("  s_movk_i32 s%d, %d" % (44 + s, 8192 * s))
    for s in range(4):
        A("  buffer_load_dwordx2 v[%d:%d], v3, s[24:27], s%d offen sc1" % (8 + 2 * s, 9 + 2 * s, 44 + s))
    for s in range(4):
        A("  buffer_load_dwordx4 v[%d:%d], v2, s[24:27], s%d offen sc1" % (24 + 4 * s, 27 + 4 * s, 44 + s))
    A("  v_lshlrev_b32 v4, 8, v1")
    A("  v_bfe_u32 v5, v0, 3, 2")
    A("  v_lshl_add_u32 v4, v5, 6, v4")
    A("  v_lshrrev_b32 v5, 5, v0")
    A("  v_lshl_add_u32 v4, v5, 1, v4")
    A("  s_lshl_b32 s56, s3, 2")
    A("  s_waitcnt vmcnt(4)")
    A("  v_max3_f32 v16, v8, v10, v12")
    A("  v_max_f32 v16, v16, v14")
    for s in range(4):
        A("  v_sub_f32 v%d, v%d, v16" % (8 + 2 * s, 8 + 2 * s))
    for s in range(4):
        A("  v_exp_f32 v%d, v%d" % (8 + 2 * s, 8 + 2 * s))
    A("  v_mul_f32 v17, v8, v9")
    A("  v_fmac_f32 v17, v10, v11")
    A("  v_fmac_f32 v17, v12, v13")
    A("  v_fmac_f32 v17, v14, v15")
    A("  v_rcp_f32 v17, v17")
    A("  s_waitcnt vmcnt(0)")
    for r in range(4):
        A("  v_mul_f32 v%d, v8, v%d" % (40 + r, 24 + r))
    for s in range(1, 4):
        for r in range(4):
            A("  v_fmac_f32 v%d, v%d, v%d" % (40 + r, 8 + 2 * s, 24 + 4 * s + r))
    for r in range(4):
        A("  v_mul_f32 v%d, v17, v%d" % (40 + r, 40 + r))
    A("  v_cvt_pk_bf16_f32 v44, v40, v41")
    A("  v_cvt_pk_bf16_f32 v45, v42, v43")
    A("  buffer_store_short v44, v4, s[32:35], s56 offen")
    A("  buffer_store_short_d16_hi v44, v4, s[32:35], s56 offen offset:16")
    A("  buffer_store_short v45, v4, s[32:35], s56 offen offset:32")
    A("  buffer_store_short_d16_hi v45, v4, s[32:35], s56 offen offset:48")
    A("L_end:")
    A("  s_endpgm")
    A('.section .rodata,"a"')
    A(".p2align 6")
    A(".amdhsa_kernel %s_kernel" % NAME)
    A("  .amdhsa_next_free_vgpr 256")
    A("  .amdhsa_next_free_sgpr 64")
    A("  .amdhsa_accum_offset 256")
    A("  .amdhsa_group_segment_fixed_size 0")
    A("  .amdhsa_kernarg_size 72")
    A("  .amdhsa_user_sgpr_count 2")
    A("  .amdhsa_user_sgpr_kernarg_segment_ptr 1")
    A("  .amdhsa_system_sgpr_workgroup_id_x 1")
    A(".end_amdhsa_kernel")
    return "\n".join(L) + "\n"

if __name__ == "__main__":
    out = sys.argv[1]
    nt = int(sys.argv[2]) if len(sys.argv) > 2 else 1
    mm = int(sys.argv[3]) if len(sys.argv) > 3 else 0
    open(out, "w").write(gen(nt=bool(nt), mapmode=mm))
```

```python
import sys, math, struct
NAME = "standalone__tree_speculative_verify_tree_attention_over_candidate_token_tree__sampling"
f2u = lambda f: struct.unpack("<I", struct.pack("<f", f))[0]

def header(L, launch):
    hdr = open("cdna_kernels/%s.s.ref" % NAME).read().split("\n")
    for h in hdr:
        if h.startswith("; @launch") or h.startswith("; Override") or h.startswith("; grid=ceil"):
            continue
        if h.startswith(";"):
            L.append(h)
        else:
            break
    L.append(launch)
    L.append('.amdgcn_target "amdgcn-amd-amdhsa--gfx950"')
    L.append(".text")
    L.append(".globl %s_kernel" % NAME)
    L.append(".p2align 8")
    L.append(".type %s_kernel,@function" % NAME)
    L.append("%s_kernel:" % NAME)

def footer(L, vg, sg):
    A = L.append
    A('.section .rodata,"a"')
    A(".p2align 6")
    A(".amdhsa_kernel %s_kernel" % NAME)
    A("  .amdhsa_next_free_vgpr %d" % vg)
    A("  .amdhsa_next_free_sgpr %d" % sg)
    A("  .amdhsa_accum_offset %d" % min(256, (vg + 3) // 4 * 4))
    A("  .amdhsa_group_segment_fixed_size 0")
    A("  .amdhsa_kernarg_size 72")
    A("  .amdhsa_user_sgpr_count 2")
    A("  .amdhsa_user_sgpr_kernarg_segment_ptr 1")
    A("  .amdhsa_system_sgpr_workgroup_id_x 1")
    A(".end_amdhsa_kernel")

def gen(nt=1, mapmode=0, stamps=0, lds=17408, sleep=1, vrot=0, prio=0, noinv=0, nopoll=0, nocomp=0, kpat=0, dmode=0, noq=0, nosig=0, pord=0):
    L = []; A = L.append
    NT = " nt" if nt else ""
    W = 4
    def ST(i):
        if stamps:
            A("  s_memrealtime s[%d:%d]" % (64 + 2 * i, 65 + 2 * i))
            A("  s_waitcnt lgkmcnt(0)")
    header(L, "; @launch grid=(256,1,1) block=(256,1,1) lds=%d" % lds)
    KA, KB, VA, VB, VT, ACC = 64, 96, 128, 160, 192, 224
    Q, S, P = 8, 24, 32
    A("  s_cmp_ge_u32 s2, 256")
    A("  s_cbranch_scc1 L_exit")
    if stamps:
        for i in range(1, 12):
            A("  s_mov_b64 s[%d:%d], 0" % (64 + 2 * i, 65 + 2 * i))
        A("  s_memrealtime s[64:65]")
    A("  s_load_dwordx16 s[4:19], s[0:1], 0")
    if prio == 1:
        A("  s_setprio 3")
    A("  s_load_dwordx2 s[20:21], s[0:1], 64")
    A("  v_lshrrev_b32 v1, 6, v0")
    A("  v_and_b32 v4, 3, v0")
    A("  v_readfirstlane_b32 s3, v1")
    A("  v_bfe_u32 v5, v0, 2, 2")
    A("  v_bfe_u32 v6, v0, 4, 2")
    if kpat == 0:
        A("  v_lshlrev_b32 v4, 10, v4")
        A("  v_lshl_add_u32 v4, v5, 8, v4")
        A("  v_lshl_add_u32 v4, v6, 4, v4")
    else:
        A("  v_lshlrev_b32 v4, 4, v4")
        A("  v_lshl_add_u32 v4, v5, 8, v4")
        A("  v_lshl_add_u32 v4, v6, 6, v4")
    A("  v_lshl_add_u32 v1, v1, 12, v4")
    A("  v_and_b32 v0, 63, v0")
    if mapmode == 0:
        A("  s_lshr_b32 s22, s2, 2")
        A("  s_and_b32 s23, s2, 3")
        A("  s_lshl_b32 s56, s2, 18")
    else:
        A("  s_and_b32 s22, s2, 63")
        A("  s_lshr_b32 s23, s2, 6")
        A("  s_lshl_b32 s56, s22, 20")
        A("  s_lshl_b32 s57, s23, 18")
        A("  s_add_u32 s56, s56, s57")
    A("  s_mov_b32 s26, 0x40000")
    A("  s_mov_b32 s27, 0x20000")
    A("  s_movk_i32 s45, 0x4000")
    A("  s_lshl_b32 s58, s3, 12")
    A("  v_lshl_add_u32 v2, v0, 4, s58")
    A("  v_and_b32 v4, 7, v0")
    A("  v_lshlrev_b32 v4, 8, v4")
    A("  v_lshl_add_u32 v3, v6, 4, v4")
    A("  s_mov_b32 s30, 0x40000")
    A("  s_mov_b32 s31, 0x20000")
    A("  s_lshl_b32 s57, s22, 11")
    A("  s_movk_i32 s34, 2048")
    A("  s_mov_b32 s35, 0x20000")
    A("  s_waitcnt lgkmcnt(0)")
    ST(1)
    A("  s_add_u32 s24, s6, s56")
    A("  s_addc_u32 s25, s7, 0")
    def kload(b, inloop=False):
        if dmode and inloop: A("  s_mov_b64 exec, s[62:63]")
        kload_(b)
        if dmode and inloop: A("  s_mov_b64 exec, -1")
    def vload(b, inloop=False):
        if dmode and inloop: A("  s_mov_b64 exec, s[62:63]")
        vload_(b)
        if dmode and inloop: A("  s_mov_b64 exec, -1")
    def kload_(b):
        for u in range(2):
            for j in range(4):
                r = b + 16 * u + 4 * j
                A("  buffer_load_dwordx4 v[%d:%d], v1, s[24:27], %s offen offset:%d%s" % (r, r + 3, "s45" if u else "0", (64 if kpat == 0 else 1024) * j, NT))
        A("  v_add_u32 v1, 0x8000, v1")
    def vload_(b):
        for i in range(8):
            r = b + 4 * i
            A("  buffer_load_dwordx4 v[%d:%d], v2, s[28:31], %s offen offset:%d%s" % (r, r + 3, "s45" if i >= 4 else "0", 1024 * (i & 3), NT))
        A("  v_add_u32 v2, 0x8000, v2")
    kload(KA)
    A("  s_add_u32 s32, s4, s57")
    A("  s_addc_u32 s33, s5, 0")
    A("  s_add_u32 s28, s8, s56")
    A("  s_addc_u32 s29, s9, 0")
    for j in range(4):
        if not noq: A("  buffer_load_dwordx4 v[%d:%d], v3, s[32:35], 0 offen offset:%d" % (Q + 4 * j, Q + 3 + 4 * j, 64 * j))
    A("  s_xor_b32 s52, s3, 1")
    A("  s_or_b32 s52, s52, s23")
    if noq: A("  s_or_b32 s52, s52, 1")
    A("  s_cbranch_scc1 L_notree1")
    A("  s_lshl_b32 s57, s22, 8")
    A("  s_add_u32 s36, s10, s57")
    A("  s_addc_u32 s37, s11, 0")
    A("  s_movk_i32 s38, 256")
    A("  s_mov_b32 s39, 0x20000")
    A("  s_add_u32 s40, s12, s57")
    A("  s_addc_u32 s41, s13, 0")
    A("  s_movk_i32 s42, 256")
    A("  s_mov_b32 s43, 0x20000")
    A("  s_lshr_b32 s58, s22, 2")
    A("  s_lshl_b32 s59, s58, 1")
    A("  s_and_b32 s59, s59, 0xfffffffc")
    A("  s_load_dword s60, s[14:15], s59")
    A("  v_lshlrev_b32 v4, 4, v6")
    A("  v_and_b32 v5, 15, v0")
    A("  v_lshlrev_b32 v5, 4, v5")
    for j in range(4):
        A("  buffer_load_dwordx4 v[%d:%d], v4, s[36:39], 0 offen offset:%d" % (VT + 4 * j, VT + 3 + 4 * j, 64 * j))
    A("  buffer_load_dwordx4 v[60:63], v5, s[40:43], 0 offen")
    A("L_notree1:")
    if pord == 0:
        kload(KB); vload(VA); vload(VB)
    else:
        vload(VA); kload(KB); vload(VB)
    A("  s_lshl_b32 s56, s22, 15")
    A("  s_add_u32 s48, s20, s56")
    A("  s_addc_u32 s49, s21, 0")
    A("  s_mov_b32 s50, 0x8000")
    A("  s_mov_b32 s51, 0x20000")
    A("  v_lshlrev_b32 v51, 4, v0")
    A("  v_lshrrev_b32 v52, 5, v0")
    A("  v_lshlrev_b32 v52, 3, v52")
    A("  v_add_u32 v52, 1024, v52")
    A("  s_mov_b32 s46, -1")
    A("  s_mov_b32 s47, -1")
    A("  s_cmp_lg_u32 s3, s23")
    A("  s_cbranch_scc1 L_noinv")
    if not nosig:
        A("  s_mov_b32 s46, 1")
        A("  s_mov_b32 s47, 3")
    for i in range(4):
        A("  v_mov_b32 v%d, -1" % (40 + i))
    A("  s_lshl_b32 s57, s23, 11")
    for k in range(1, 4):
        A("  s_add_u32 s56, s23, %d" % k)
        A("  s_and_b32 s56, s56, 3")
        A("  s_lshl_b32 s56, s56, 13")
        A("  s_add_u32 s56, s56, s57")
        if not noinv:
            A("  buffer_store_dwordx4 v[40:43], v51, s[48:51], s56 offen sc1")
            A("  buffer_store_dwordx2 v[40:41], v52, s[48:51], s56 offen sc1")
    A("L_noinv:")
    c = (128 ** -0.5) * math.log2(math.e)
    A("  s_mov_b32 s53, 0x%08x" % f2u(c))
    A("  s_mov_b32 s54, 0x05040100")
    A("  s_mov_b32 s55, 0x07060302")
    A("  v_mov_b32 v4, 0xff800000")
    A("  v_mov_b32 v5, 0")
    for i in range(16):
        A("  v_mov_b64 v[%d:%d], 0" % (ACC + 2 * i, ACC + 2 * i + 1))
    A("  v_and_b32 v7, 7, v0")
    A("  v_mul_u32_u24 v40, 528, v7")
    A("  v_lshl_add_u32 v40, v6, 7, v40")
    A("  s_lshl_b32 s58, s3, 12")
    A("  v_add_u32 v40, s58, v40")
    for e in range(1, 8):
        A("  v_xor_b32 v%d, %d, v40" % (40 + e, 16 * e))
    A("  v_and_b32 v49, 15, v0")
    A("  v_lshlrev_b32 v49, 5, v49")
    A("  s_lshl_b32 s58, s3, 3")
    A("  v_add_u32 v49, s58, v49")
    A("  v_lshrrev_b32 v38, 5, v0")
    A("  s_lshl_b32 s58, s3, 1")
    A("  v_add_u32 v38, s58, v38")
    A("  v_lshlrev_b32 v50, 5, v38")
    A("  v_xor_b32 v48, v7, v38")
    A("  v_lshlrev_b32 v48, 4, v48")
    A("  v_bfe_u32 v39, v0, 3, 2")
    A("  v_lshl_add_u32 v48, v39, 7, v48")
    A("  v_lshl_add_u32 v48, v38, 9, v48")
    A("  v_lshlrev_b32 v53, 8, v38")
    A("  v_lshl_add_u32 v53, v39, 6, v53")
    A("  v_lshl_add_u32 v53, v7, 1, v53")
    A("  s_cmp_lg_u32 s52, 0")
    A("  s_cbranch_scc1 L_notree2")
    A("  s_waitcnt vmcnt(24)")
    for j in range(4):
        cc = "0" if j == 0 else "v[56:59]"
        A("  v_mfma_f32_16x16x32_bf16 v[56:59], v[%d:%d], v[%d:%d], %s" % (VT + 4 * j, VT + 3 + 4 * j, Q + 4 * j, Q + 3 + 4 * j, cc))
    A("  s_waitcnt lgkmcnt(0)")
    A("  s_lshr_b32 s58, s22, 2")
    A("  s_and_b32 s58, s58, 1")
    A("  s_lshl_b32 s58, s58, 4")
    A("  s_lshr_b32 s60, s60, s58")
    A("  s_lshl_b32 s60, s60, 16")
    A("  v_sub_f32 v36, 1.0, s60")
    A("  s_mov_b32 s61, 0x%08x" % f2u(-1e9 * math.log2(math.e)))
    A("  v_mul_f32 v36, s61, v36")
    A("  v_mov_b32 v5, 0x3e800000")
    A("  v_cmp_gt_u32 vcc, 16, v0")
    A("  v_mov_b32 v24, 0x3f80")
    A("  v_mov_b32 v25, 0x3f800000")
    A("  v_cndmask_b32 v24, 0, v24, vcc")
    A("  v_cndmask_b32 v25, 0, v25, vcc")
    A("  v_fma_f32 v4, v56, s53, v36")
    for e in range(8):
        q = VT + 16 + 4 * (e & 1)
        for m in range(4):
            A("  v_mov_b32 v%d, %s" % (q + m, ("v%d" % (24 + (e & 1))) if m == (e >> 1) else "0"))
        A("  s_nop 1")
        A("  v_mfma_f32_16x16x32_bf16 v[%d:%d], v[60:63], v[%d:%d], 0" % (ACC + 4 * e, ACC + 4 * e + 3, q, q + 3))
    A("L_notree2:")
    A("  s_mov_b32 s36, s18")
    A("  s_mov_b32 s37, s19")
    A("  s_movk_i32 s38, 256")
    A("  s_mov_b32 s39, 0x20000")
    A("  s_lshl_b32 s56, s22, 11")
    A("  s_add_u32 s40, s16, s56")
    A("  s_addc_u32 s41, s17, 0")
    A("  s_movk_i32 s42, 2048")
    A("  s_mov_b32 s43, 0x20000")
    A("  s_lshl_b32 s59, s22, 2")
    A("  v_mov_b32 v54, s23")
    A("  v_mov_b32 v55, 1")
    A("  v_mov_b32 v37, 0")
    A("  s_mov_b32 s44, 0")
    ST(2)
    def tile(KX, VX, tag, first):
        if nocomp:
            n0 = len(L)
            tile_(KX, VX, tag, first)
            L[n0:] = [x for x in L[n0:] if not (x.startswith("  v_") and not x.startswith("  v_add_u32") and not x.startswith("  v_cmp"))]
        else:
            tile_(KX, VX, tag, first)
    def tile_(KX, VX, tag, first):
        A("  s_waitcnt vmcnt(24)")
        if first:
            A("  s_cmp_lg_u32 s44, s46")
            A("  s_cbranch_scc1 L_nosig")
            A("  s_mov_b64 exec, 1")
            A("  buffer_store_byte v55, v54, s[36:39], s59 offen sc1")
            A("  s_mov_b64 exec, -1")
            A("L_nosig:")
            A("  s_cmp_lg_u32 s44, s47")
            A("  s_cbranch_scc1 L_nochk")
            A("  buffer_load_dword v37, v37, s[36:39], s59 offen sc1")
            A("L_nochk:")
        for j in range(4):
            for u in range(2):
                d = S + 4 * u
                a = KX + 16 * u + 4 * j
                cc = "0" if j == 0 else "v[%d:%d]" % (d, d + 3)
                A("  v_mfma_f32_16x16x32_bf16 v[%d:%d], v[%d:%d], v[%d:%d], %s" % (d, d + 3, a, a + 3, Q + 4 * j, Q + 3 + 4 * j, cc))
        kload(KX, True)
        A("  v_max3_f32 v6, v%d, v%d, v%d" % (S, S + 1, S + 2))
        A("  v_max3_f32 v6, v6, v%d, v%d" % (S + 3, S + 4))
        A("  v_max3_f32 v6, v6, v%d, v%d" % (S + 5, S + 6))
        A("  v_max_f32 v6, v6, v%d" % (S + 7))
        A("  v_mul_f32 v6, s53, v6")
        A("  v_cmp_gt_f32 vcc, v6, v4")
        A("  s_cbranch_vccz L_skip%s" % tag)
        A("  v_mov_b32 v7, v6")
        A("  s_nop 1")
        A("  v_permlane32_swap_b32 v6, v7")
        A("  v_max_f32 v6, v6, v7")
        A("  v_mov_b32 v7, v6")
        A("  s_nop 1")
        A("  v_permlane16_swap_b32 v6, v7")
        A("  v_max3_f32 v6, v6, v7, v4")
        A("  v_sub_f32 v36, v4, v6")
        A("  v_exp_f32 v36, v36")
        A("  v_mov_b32 v4, v6")
        A("  v_mul_f32 v5, v5, v36")
        for i in range(32):
            A("  v_mul_f32 v%d, v%d, v36" % (ACC + i, ACC + i))
        A("L_skip%s:" % tag)
        for i in range(8):
            A("  v_fma_f32 v%d, v%d, s53, -v4" % (S + i, S + i))
        for i in range(8):
            A("  v_exp_f32 v%d, v%d" % (S + i, S + i))
        for i in range(8):
            A("  v_add_f32 v5, v5, v%d" % (S + i))
        for m in range(4):
            A("  v_cvt_pk_bf16_f32 v%d, v%d, v%d" % (P + m, S + 2 * m, S + 1 + 2 * m))
        for m in range(4):
            A("  s_waitcnt vmcnt(%d)" % (24 + 6 - 2 * m))
            for e in range(8):
                A("  v_perm_b32 v%d, v%d, v%d, s%d" % (VT + 4 * e + m, VX + 4 * (2 * m + 1) + (e >> 1), VX + 4 * (2 * m) + (e >> 1), 54 + (e & 1)))
        for e in range(8):
            A("  v_mfma_f32_16x16x32_bf16 v[%d:%d], v[%d:%d], v[%d:%d], v[%d:%d]" % (ACC + 4 * e, ACC + 4 * e + 3, VT + 4 * e, VT + 4 * e + 3, P, P + 3, ACC + 4 * e, ACC + 4 * e + 3))
    A("L_loop:")
    if prio == 1:
        A("  s_cmp_eq_u32 s44, 1")
        A("  s_cbranch_scc0 L_p1")
        A("  s_setprio 2")
        A("L_p1:")
        A("  s_cmp_eq_u32 s44, 2")
        A("  s_cbranch_scc0 L_p2")
        A("  s_setprio 1")
        A("L_p2:")
        A("  s_cmp_eq_u32 s44, 3")
        A("  s_cbranch_scc0 L_p3")
        A("  s_setprio 0")
        A("L_p3:")
    if dmode:
        A("  s_cmp_eq_u32 s44, 3")
        A("  s_cselect_b64 s[62:63], 0, -1")
    tile(KA, VA, "A", True)
    vload(VA, True)
    tile(KB, VB, "B", False)
    A("  s_add_u32 s44, s44, 1")
    A("  s_cmp_eq_u32 s44, 4")
    A("  s_cbranch_scc1 L_done")
    vload(VB)
    A("  s_branch L_loop")
    A("L_done:")
    ST(7)
    A("  v_mov_b32 v7, v5")
    A("  s_nop 1")
    A("  v_permlane32_swap_b32 v5, v7")
    A("  v_add_f32 v5, v5, v7")
    A("  v_mov_b32 v7, v5")
    A("  s_nop 1")
    A("  v_permlane16_swap_b32 v5, v7")
    A("  v_add_f32 v5, v5, v7")
    A("  ds_write_b64 v49, v[4:5] offset:16384")
    A("  s_mov_b32 exec_lo, 0x00ff00ff")
    A("  s_mov_b32 exec_hi, 0x00ff00ff")
    for e in range(8):
        A("  ds_write_b128 v%d, v[%d:%d]" % (40 + e, ACC + 4 * e, ACC + 4 * e + 3))
    A("  s_mov_b64 exec, -1")
    A("  s_cmp_lg_u32 s3, s23")
    A("  s_cbranch_scc1 L_bar")
    A("  s_mov_b32 s57, 0x200000")
    A("L_flagspin:")
    A("  v_readfirstlane_b32 s56, v37")
    A("  s_cmp_eq_u32 s56, 0x01010101")
    A("  s_cbranch_scc1 L_flagok")
    if nosig: A("  s_branch L_flagok")
    A("  v_mov_b32 v37, 0")
    A("  buffer_load_dword v37, v37, s[36:39], s59 offen sc1")
    A("  s_sub_u32 s57, s57, 1")
    A("  s_waitcnt vmcnt(0)")
    A("  s_cbranch_scc0 L_flagspin")
    A("L_flagok:")
    A("  s_lshl_b32 s57, s23, 13")
    for k in range(1, 4):
        A("  s_add_u32 s56, s23, %d" % k)
        A("  s_and_b32 s56, s56, 3")
        A("  s_lshl_b32 s56, s56, 11")
        A("  s_add_u32 s%d, s56, s57" % (60 + k))
    A("L_bar:")
    A("  s_lshl_b32 s57, s3, 13")
    A("  s_lshl_b32 s56, s23, 11")
    A("  s_add_u32 s60, s56, s57")
    A("  s_cmp_lg_u32 s3, s23")
    A("  s_waitcnt lgkmcnt(0)")
    A("  s_barrier")
    def polls():
        for k in range(3):
            A("  buffer_load_dwordx2 v[%d:%d], v52, s[48:51], s%d offen sc1" % (20 + 2 * k, 21 + 2 * k, 61 + k))
            A("  buffer_load_dwordx4 v[%d:%d], v51, s[48:51], s%d offen sc1" % (8 + 4 * k, 11 + 4 * k, 61 + k))
    A("  ds_read_b128 v[208:211], v50 offset:16384")
    A("  ds_read_b128 v[212:215], v50 offset:16400")
    for w in range(4):
        A("  ds_read_b128 v[%d:%d], v48 offset:%d" % (192 + 4 * w, 195 + 4 * w, 4096 * w))
    A("  s_cbranch_scc1 L_nopoll1")
    polls()
    A("L_nopoll1:")
    if stamps:
        A("  s_memrealtime s[80:81]")
        A("  s_waitcnt lgkmcnt(0)")
    A("  s_waitcnt lgkmcnt(4)")
    A("  v_max3_f32 v4, v208, v210, v212")
    A("  v_max_f32 v4, v4, v214")
    for w in range(4):
        A("  v_sub_f32 v%d, v%d, v4" % (208 + 2 * w, 208 + 2 * w))
    for w in range(4):
        A("  v_exp_f32 v%d, v%d" % (208 + 2 * w, 208 + 2 * w))
    A("  v_mul_f32 v5, v208, v209")
    A("  s_waitcnt lgkmcnt(3)")
    for r in range(4):
        A("  v_mul_f32 v%d, v208, v%d" % (28 + r, 192 + r))
    for w in range(1, 4):
        A("  v_fmac_f32 v5, v%d, v%d" % (208 + 2 * w, 209 + 2 * w))
        A("  s_waitcnt lgkmcnt(%d)" % (3 - w))
        for r in range(4):
            A("  v_fmac_f32 v%d, v%d, v%d" % (28 + r, 208 + 2 * w, 192 + 4 * w + r))
    A("  s_cbranch_scc0 L_consume")
    A("  buffer_store_dwordx4 v[28:31], v51, s[48:51], s60 offen sc1")
    A("  buffer_store_dwordx2 v[4:5], v52, s[48:51], s60 offen sc1")
    A("  s_branch L_end")
    A("L_consume:")
    ST(9)
    A("  s_mov_b32 s57, 0x200000")
    A("L_poll:")
    A("  s_waitcnt vmcnt(0)")
    A("  v_max3_u32 v6, v8, v9, v10")
    for i in range(11, 25, 2):
        A("  v_max3_u32 v6, v6, v%d, v%d" % (i, i + 1))
    A("  v_max_u32 v6, v6, v25")
    A("  v_cmp_eq_u32 vcc, -1, v6")
    A("  s_cbranch_vccz L_pollok")
    if nopoll:
        A("  s_branch L_pollok")
    if sleep:
        A("  s_sleep %d" % sleep)
    polls()
    A("  s_sub_u32 s57, s57, 1")
    A("  s_cbranch_scc0 L_poll")
    A("  s_waitcnt vmcnt(0)")
    A("L_pollok:")
    ST(10)
    A("  v_max3_f32 v6, v4, v20, v22")
    A("  v_max_f32 v6, v6, v24")
    A("  v_sub_f32 v4, v4, v6")
    for k in range(3):
        A("  v_sub_f32 v%d, v%d, v6" % (20 + 2 * k, 20 + 2 * k))
    A("  v_exp_f32 v4, v4")
    for k in range(3):
        A("  v_exp_f32 v%d, v%d" % (20 + 2 * k, 20 + 2 * k))
    A("  v_mul_f32 v5, v4, v5")
    for k in range(3):
        A("  v_fmac_f32 v5, v%d, v%d" % (20 + 2 * k, 21 + 2 * k))
    A("  v_rcp_f32 v5, v5")
    for r in range(4):
        A("  v_mul_f32 v%d, v4, v%d" % (28 + r, 28 + r))
    for k in range(3):
        for r in range(4):
            A("  v_fmac_f32 v%d, v%d, v%d" % (28 + r, 20 + 2 * k, 8 + 4 * k + r))
    for r in range(4):
        A("  v_mul_f32 v%d, v5, v%d" % (28 + r, 28 + r))
    A("  v_cvt_pk_bf16_f32 v28, v28, v29")
    A("  v_cvt_pk_bf16_f32 v29, v30, v31")
    A("  buffer_store_short v28, v53, s[40:43], 0 offen")
    A("  buffer_store_short_d16_hi v28, v53, s[40:43], 0 offen offset:16")
    A("  buffer_store_short v29, v53, s[40:43], 0 offen offset:32")
    A("  buffer_store_short_d16_hi v29, v53, s[40:43], 0 offen offset:48")
    A("L_end:")
    if stamps:
        A("  s_waitcnt vmcnt(0)")
        ST(11)
        A("  s_add_u32 s24, s20, 0x8000000")
        A("  s_addc_u32 s25, s21, 0")
        A("  s_mov_b32 s26, 0x100000")
        A("  s_mov_b32 s27, 0x20000")
        A("  s_mul_i32 s56, s2, %d" % W)
        A("  s_add_u32 s56, s56, s3")
        A("  s_lshl_b32 s56, s56, 7")
        A("  s_mov_b64 exec, 1")
        A("  v_mov_b32 v1, 0")
        for i in range(12):
            A("  v_mov_b32 v2, s%d" % (64 + 2 * i))
            A("  v_mov_b32 v3, s%d" % (65 + 2 * i))
            A("  buffer_store_dwordx2 v[2:3], v1, s[24:27], s56 offen offset:%d" % (8 * i))
            A("  s_nop 1")
        A("  s_getreg_b32 s57, hwreg(HW_REG_XCC_ID)")
        A("  s_getreg_b32 s58, hwreg(HW_REG_HW_ID)")
        A("  v_mov_b32 v2, s57")
        A("  v_mov_b32 v3, s58")
        A("  buffer_store_dwordx2 v[2:3], v1, s[24:27], s56 offen offset:120")
    A("L_exit:")
    A("  s_endpgm")
    footer(L, 256, 96 if stamps else 64)
    return "\n".join(L) + "\n"

if __name__ == "__main__":
    for a in sys.argv[1:]:
        name, _, kv = a.partition(":")
        kw = {}
        for x in kv.split(","):
            if not x: continue
            k, v = x.split("=")
            kw[k] = int(v)
        open(name, "w").write(gen(**kw))
```

```python
import sys, math, struct
from gen2 import header, footer, f2u, NAME

def gen(nt=1, mapmode=0, stamps=0, N=18, sleep=1, it1=3, it2=6, chkit=24, spec=1, lprio=3, ldsx=0, nohand=0, nocomp=0, nobar=0):
    L = []; A = L.append
    NT = " nt" if nt else ""
    W = 5
    def ST(i):
        if stamps:
            A("  s_memrealtime s[%d:%d]" % (64 + 2 * i, 65 + 2 * i))
            A("  s_waitcnt lgkmcnt(0)")
    QL = 65536
    header(L, "; @launch grid=(256,1,1) block=(320,1,1) lds=%d" % (QL + 4096 + ldsx))
    A("  s_cmp_ge_u32 s2, 256")
    A("  s_cbranch_scc1 L_exit")
    if stamps:
        for i in range(1, 12):
            A("  s_mov_b64 s[%d:%d], 0" % (64 + 2 * i, 65 + 2 * i))
        A("  s_memrealtime s[64:65]")
    A("  s_load_dwordx16 s[4:19], s[0:1], 0")
    A("  s_load_dwordx2 s[20:21], s[0:1], 64")
    A("  v_lshrrev_b32 v1, 6, v0")
    A("  v_and_b32 v0, 63, v0")
    A("  v_readfirstlane_b32 s3, v1")
    if mapmode == 0:
        A("  s_lshr_b32 s22, s2, 2")
        A("  s_and_b32 s23, s2, 3")
        A("  s_lshl_b32 s56, s2, 18")
    else:
        A("  s_and_b32 s22, s2, 63")
        A("  s_lshr_b32 s23, s2, 6")
        A("  s_lshl_b32 s56, s22, 20")
        A("  s_lshl_b32 s57, s23, 18")
        A("  s_add_u32 s56, s56, s57")
    A("  v_lshrrev_b32 v8, 4, v0")
    A("  v_and_b32 v9, 15, v0")
    A("  s_cmp_lg_u32 s3, 0")
    A("  s_cbranch_scc1 L_cons")
    if lprio:
        A("  s_setprio %d" % lprio)
    A("  v_xor_b32 v1, v9, v8")
    A("  v_lshlrev_b32 v1, 4, v1")
    A("  v_lshl_add_u32 v1, v8, 8, v1")
    A("  v_xor_b32 v2, 64, v1")
    A("  v_xor_b32 v3, 0x80, v1")
    A("  v_xor_b32 v4, 0xc0, v1")
    A("  v_lshlrev_b32 v5, 1, v8")
    A("  v_xor_b32 v5, v9, v5")
    A("  v_lshlrev_b32 v5, 4, v5")
    A("  v_lshl_add_u32 v5, v8, 8, v5")
    A("  v_xor_b32 v6, 0x80, v5")
    A("  v_lshlrev_b32 v7, 4, v0")
    A("  s_mov_b32 s26, 0x40000")
    A("  s_mov_b32 s27, 0x20000")
    A("  s_mov_b32 s30, 0x40000")
    A("  s_mov_b32 s31, 0x20000")
    A("  s_lshl_b32 s57, s22, 11")
    A("  s_movk_i32 s34, 2048")
    A("  s_mov_b32 s35, 0x20000")
    A("  s_movk_i32 s45, 0x1000")
    A("  s_mov_b32 m0, 0")
    A("  s_waitcnt lgkmcnt(0)")
    ST(1)
    A("  s_add_u32 s24, s6, s56")
    A("  s_addc_u32 s25, s7, 0")
    def kunit(soff, wait):
        for i in range(4):
            wait(i)
            A("  buffer_load_dwordx4 v%d, s[24:27], %s offen offset:%d%s lds" % (1 + i, soff, 1024 * i, NT))
    def vunit(soff, wait):
        for i in range(4):
            wait(i)
            A("  buffer_load_dwordx4 v%d, s[28:31], %s offen offset:%d%s lds" % (5 + (i & 1), soff, 1024 * i, NT))
    now = lambda i: None
    kunit("0", now)
    A("  s_mov_b32 m0, s45")
    A("  s_add_u32 s32, s4, s57")
    A("  s_addc_u32 s33, s5, 0")
    kunit("s45", now)
    A("  s_mov_b32 m0, %d" % QL)
    A("  s_add_u32 s28, s8, s56")
    A("  s_addc_u32 s29, s9, 0")
    A("  buffer_load_dwordx4 v7, s[32:35], 0 offen lds")
    A("  buffer_load_dwordx4 v7, s[32:35], 0 offen offset:1024 lds")
    A("  s_cmp_lg_u32 s23, 0")
    A("  s_cbranch_scc1 L_notreeld")
    A("  s_lshl_b32 s57, s22, 8")
    A("  s_add_u32 s36, s10, s57")
    A("  s_addc_u32 s37, s11, 0")
    A("  s_movk_i32 s38, 256")
    A("  s_mov_b32 s39, 0x20000")
    A("  s_add_u32 s40, s12, s57")
    A("  s_addc_u32 s41, s13, 0")
    A("  s_mov_b32 m0, %d" % (QL + 2048))
    A("  s_movk_i32 s42, 256")
    A("  s_mov_b32 s43, 0x20000")
    A("  buffer_load_dwordx4 v7, s[36:39], 0 offen lds")
    A("  s_mov_b32 m0, %d" % (QL + 3072))
    A("  s_nop 0")
    A("  buffer_load_dwordx4 v7, s[40:43], 0 offen lds")
    A("L_notreeld:")
    lag = 1 + (N - 1) // 16
    p = (N - 1) % 16
    assert lag in (1, 2)
    A("  s_mov_b32 s44, 1")
    A("  s_movk_i32 s45, 0x2000")
    A("  s_mov_b32 s46, 0")
    A("  s_movk_i32 s47, 0x4000")
    A("L_lloop:")
    def mkwait(base, cond):
        def w(i):
            A("  s_waitcnt vmcnt(%d)" % (N - 1))
            if base + i == p:
                if cond and lag == 2:
                    A("  s_cmp_eq_u32 s44, 1")
                    A("  s_cbranch_scc1 L_nobar")
                    A("  s_barrier")
                    A("L_nobar:")
                else:
                    A("  s_barrier")
        return w
    A("  s_mov_b32 m0, s47")
    kunit("s45", mkwait(0, True))
    A("  s_add_u32 m0, s47, 0x1000")
    A("  s_add_u32 s48, s45, 0x1000")
    kunit("s48", mkwait(4, True))
    A("  s_add_u32 m0, s47, 0x2000")
    A("  s_add_u32 s45, s45, 0x2000")
    vunit("s46", mkwait(8, True))
    A("  s_add_u32 m0, s47, 0x3000")
    A("  s_add_u32 s48, s46, 0x1000")
    vunit("s48", mkwait(12, True))
    A("  s_add_u32 s46, s46, 0x2000")
    A("  s_add_u32 s47, s47, 0x4000")
    A("  s_and_b32 s47, s47, 0xffff")
    A("  s_add_u32 s44, s44, 1")
    A("  s_cmp_lt_u32 s44, 32")
    A("  s_cbranch_scc1 L_lloop")
    A("  s_movk_i32 s48, 0x2000")
    A("  s_mov_b32 m0, s48")
    vunit("s46", mkwait(0, False))
    A("  s_movk_i32 s48, 0x3000")
    A("  s_mov_b32 m0, s48")
    A("  s_add_u32 s48, s46, 0x1000")
    vunit("s48", mkwait(4, False))
    nb = 32 - lag + (1 if p < 8 else 0)
    ST(2)
    for b in range(nb, 33):
        rem = 0 if b == 32 else 16 * (31 - b) + 8
        A("  s_waitcnt vmcnt(%d)" % rem)
        if b == 32: ST(3)
        A("  s_barrier")
    A("  s_branch L_end")
    A("L_cons:")
    Q, S, P, KF, VF, ACC = 12, 28, 36, 40, 72, 80
    A("  s_sub_u32 s3, s3, 1")
    A("  v_xor_b32 v1, v8, v9")
    A("  v_lshlrev_b32 v1, 4, v1")
    A("  v_lshl_add_u32 v1, v9, 8, v1")
    A("  v_xor_b32 v2, 64, v1")
    A("  v_xor_b32 v3, 0x80, v1")
    A("  v_xor_b32 v4, 0xc0, v1")
    A("  v_bfe_u32 v5, v0, 2, 4")
    A("  v_and_b32 v6, 7, v5")
    A("  v_lshlrev_b32 v6, 1, v6")
    A("  v_bfe_u32 v7, v0, 1, 1")
    A("  s_lshl_b32 s57, s3, 2")
    A("  v_add_u32 v7, s57, v7")
    A("  v_xor_b32 v6, v6, v7")
    A("  v_lshlrev_b32 v6, 4, v6")
    A("  v_lshl_add_u32 v5, v5, 8, v6")
    A("  v_and_b32 v6, 1, v0")
    A("  v_lshl_add_u32 v5, v6, 3, v5")
    A("  v_add_u32 v5, 0x2000, v5")
    A("  v_xor_b32 v6, 32, v5")
    A("  v_and_b32 v7, 7, v0")
    A("  v_lshlrev_b32 v7, 8, v7")
    A("  v_lshlrev_b32 v10, 4, v8")
    A("  v_lshlrev_b32 v11, 3, v8")
    A("  s_lshl_b32 s57, s3, 6")
    A("  v_add_u32 v11, s57, v11")
    A("  v_bfe_u32 v93, v0, 3, 1")
    A("  v_lshl_add_u32 v93, v93, 5, v11")
    A("  v_add_u32 v93, v93, v7")
    A("  v_add_u32 v10, %d, v10" % QL)
    A("  v_add_u32 v11, %d, v11" % QL)
    A("  v_add_u32 v7, v7, v10")
    A("  v_lshlrev_b32 v91, 4, v0")
    c = (128 ** -0.5) * math.log2(math.e)
    A("  s_mov_b32 s53, 0x%08x" % f2u(c))
    A("  v_mov_b32 v88, 0xff800000")
    A("  v_mov_b32 v89, 0")
    for i in range(4):
        A("  v_mov_b64 v[%d:%d], 0" % (ACC + 2 * i, ACC + 2 * i + 1))
    A("  v_mov_b32 v90, 0")
    A("  v_mov_b32 v92, 0")
    A("  s_waitcnt lgkmcnt(0)")
    A("  s_lshl_b32 s56, s22, 15")
    A("  s_add_u32 s48, s20, s56")
    A("  s_addc_u32 s49, s21, 0")
    A("  s_mov_b32 s50, 0x8000")
    A("  s_mov_b32 s51, 0x20000")
    A("  s_mov_b32 s36, s18")
    A("  s_mov_b32 s37, s19")
    A("  s_movk_i32 s38, 256")
    A("  s_mov_b32 s39, 0x20000")
    A("  s_lshl_b32 s56, s22, 11")
    A("  s_add_u32 s40, s16, s56")
    A("  s_addc_u32 s41, s17, 0")
    A("  s_movk_i32 s42, 2048")
    A("  s_mov_b32 s43, 0x20000")
    A("  s_lshr_b32 s58, s22, 2")
    A("  s_lshl_b32 s57, s58, 1")
    A("  s_and_b32 s57, s57, 0xfffffffc")
    A("  s_load_dword s54, s[14:15], s57")
    A("  s_lshl_b32 s57, s3, 13")
    A("  s_lshl_b32 s56, s23, 11")
    A("  s_add_u32 s60, s56, s57")
    A("  s_lshl_b32 s57, s23, 13")
    for k in range(1, 4):
        A("  s_add_u32 s56, s23, %d" % k)
        A("  s_and_b32 s56, s56, 3")
        A("  s_lshl_b32 s56, s56, 11")
        A("  s_add_u32 s%d, s56, s57" % (60 + k))
    A("  s_add_u32 s24, s20, 0x200000")
    A("  s_addc_u32 s25, s21, 0")
    A("  s_movk_i32 s26, 64")
    A("  s_mov_b32 s27, 0x20000")
    A("  s_xor_b32 s56, s3, 3")
    A("  s_or_b32 s56, s56, s2")
    A("  s_cselect_b32 s44, -1, %d" % it1)
    A("  s_cselect_b32 s45, -1, %d" % it2)
    A("  s_cbranch_scc1 L_notag0")
    A("  buffer_load_dword v94, v92, s[24:27], 0 offen sc1")
    A("L_notag0:")
    A("  s_waitcnt lgkmcnt(0)")
    A("  s_barrier")
    ST(4)
    for j in range(4):
        A("  ds_read_b128 v[%d:%d], v7 offset:%d" % (Q + 4 * j, Q + 3 + 4 * j, 64 * j))
    def kreads(regs):
        for u in range(2):
            for j in range(4):
                r = KF + 16 * u + 4 * j
                A("  ds_read_b128 v[%d:%d], v%d offset:%d" % (r, r + 3, regs[j], 4096 * u))
    kreads([1, 2, 3, 4])
    A("  s_cmp_lg_u32 s23, 0")
    A("  s_cbranch_scc1 L_notree")
    A("  s_waitcnt lgkmcnt(0)")
    for j in range(4):
        A("  ds_read_b128 v[%d:%d], v10 offset:%d" % (100 + 4 * j, 103 + 4 * j, 2048 + 64 * j))
    A("  ds_read_b64 v[116:117], v11 offset:%d" % (3072))
    A("  ds_read_b64 v[118:119], v11 offset:%d" % (3072 + 32))
    A("  s_and_b32 s58, s58, 1")
    A("  s_lshl_b32 s58, s58, 4")
    A("  s_lshr_b32 s54, s54, s58")
    A("  s_lshl_b32 s54, s54, 16")
    A("  v_sub_f32 v120, 1.0, s54")
    A("  s_mov_b32 s55, 0x%08x" % f2u(-1e9 * math.log2(math.e)))
    A("  v_mul_f32 v120, s55, v120")
    A("  v_mov_b32 v89, 0x3e800000")
    A("  s_waitcnt lgkmcnt(0)")
    for j in range(4):
        cc = "0" if j == 0 else "v[124:127]"
        A("  v_mfma_f32_16x16x32_bf16 v[124:127], v[%d:%d], v[%d:%d], %s" % (100 + 4 * j, 103 + 4 * j, Q + 4 * j, Q + 3 + 4 * j, cc))
    for a in range(2):
        A("  v_lshlrev_b32 v%d, 16, v%d" % (ACC + 4 * a, 116 + 2 * a))
        A("  v_and_b32 v%d, 0xffff0000, v%d" % (ACC + 4 * a + 1, 116 + 2 * a))
        A("  v_lshlrev_b32 v%d, 16, v%d" % (ACC + 4 * a + 2, 117 + 2 * a))
        A("  v_and_b32 v%d, 0xffff0000, v%d" % (ACC + 4 * a + 3, 117 + 2 * a))
    A("  s_nop 1")
    A("  v_fma_f32 v88, v124, s53, v120")
    A("L_notree:")
    A("  s_mov_b32 s47, 0")
    A("  s_mov_b32 s52, 0")
    A("  s_waitcnt lgkmcnt(0)")
    A("  s_branch L_qk")
    A("L_cloop:")
    A("  s_barrier")
    A("  ds_read_b64_tr_b16 v[%d:%d], v104" % (VF, VF + 1))
    A("  ds_read_b64_tr_b16 v[%d:%d], v104 offset:4096" % (VF + 2, VF + 3))
    A("  ds_read_b64_tr_b16 v[%d:%d], v105" % (VF + 4, VF + 5))
    A("  ds_read_b64_tr_b16 v[%d:%d], v105 offset:4096" % (VF + 6, VF + 7))
    kreads([100, 101, 102, 103])
    A("  s_waitcnt lgkmcnt(10)")
    A("  v_mfma_f32_16x16x32_bf16 v[%d:%d], v[%d:%d], v[%d:%d], v[%d:%d]" % (ACC, ACC + 3, VF, VF + 3, P, P + 3, ACC, ACC + 3))
    A("  s_waitcnt lgkmcnt(8)")
    A("  v_mfma_f32_16x16x32_bf16 v[%d:%d], v[%d:%d], v[%d:%d], v[%d:%d]" % (ACC + 4, ACC + 7, VF + 4, VF + 7, P, P + 3, ACC + 4, ACC + 7))
    A("L_qk:")
    for u in range(2):
        for j in range(4):
            d = S + 4 * u
            a = KF + 16 * u + 4 * j
            cc = "0" if j == 0 else "v[%d:%d]" % (d, d + 3)
            A("  s_waitcnt lgkmcnt(%d)" % (7 - 4 * u - j))
            A("  v_mfma_f32_16x16x32_bf16 v[%d:%d], v[%d:%d], v[%d:%d], %s" % (d, d + 3, a, a + 3, Q + 4 * j, Q + 3 + 4 * j, cc))
    A("  s_add_u32 s52, s52, 0x4000")
    A("  s_and_b32 s52, s52, 0xffff")
    for k in range(6):
        A("  v_add_u32 v%d, s52, v%d" % (100 + k, 1 + k))
    A("  s_add_u32 s47, s47, 1")
    A("  v_max3_f32 v8, v%d, v%d, v%d" % (S, S + 1, S + 2))
    A("  v_max3_f32 v8, v8, v%d, v%d" % (S + 3, S + 4))
    A("  v_max3_f32 v8, v8, v%d, v%d" % (S + 5, S + 6))
    A("  v_max_f32 v8, v8, v%d" % (S + 7))
    A("  v_mul_f32 v8, s53, v8")
    A("  v_cmp_gt_f32 vcc, v8, v88")
    A("  s_cbranch_vccz L_skip")
    A("  v_mov_b32 v9, v8")
    A("  s_nop 1")
    A("  v_permlane32_swap_b32 v8, v9")
    A("  v_max_f32 v8, v8, v9")
    A("  v_mov_b32 v9, v8")
    A("  s_nop 1")
    A("  v_permlane16_swap_b32 v8, v9")
    A("  v_max3_f32 v8, v8, v9, v88")
    A("  v_sub_f32 v9, v88, v8")
    A("  v_exp_f32 v9, v9")
    A("  v_mov_b32 v88, v8")
    A("  v_mul_f32 v89, v89, v9")
    for i in range(8):
        A("  v_mul_f32 v%d, v%d, v9" % (ACC + i, ACC + i))
    A("L_skip:")
    for i in range(8):
        A("  v_fma_f32 v%d, v%d, s53, -v88" % (S + i, S + i))
    for i in range(8):
        A("  v_exp_f32 v%d, v%d" % (S + i, S + i))
    for m in range(4):
        A("  v_cvt_pk_bf16_f32 v%d, v%d, v%d" % (P + m, S + 2 * m, S + 1 + 2 * m))
    for i in range(8):
        A("  v_add_f32 v89, v89, v%d" % (S + i))
    A("  s_cmp_eq_u32 s47, s44")
    A("  s_cbranch_scc0 L_not1")
    A("  s_waitcnt vmcnt(0)")
    A("  v_add_u32 v94, 1, v94")
    A("  v_max_u32 v94, 1, v94")
    A("  s_mov_b64 exec, 1")
    A("  buffer_store_dword v94, v92, s[24:27], 0 offen sc1")
    A("  s_mov_b64 exec, -1")
    A("L_not1:")
    A("  s_cmp_eq_u32 s47, s45")
    A("  s_cbranch_scc0 L_not2")
    A("  s_waitcnt vmcnt(0)")
    A("  s_mov_b64 exec, 1")
    A("  buffer_store_dword v94, v92, s[36:39], 0 offen sc1")
    A("  s_mov_b64 exec, -1")
    A("L_not2:")
    A("  s_cmp_eq_u32 s47, %d" % chkit)
    A("  s_cbranch_scc0 L_nochk")
    A("  buffer_load_dword v90, v92, s[36:39], 0 offen")
    A("L_nochk:")
    A("L_nodrain:")
    A("  s_cmp_lt_u32 s47, 32")
    A("  s_cbranch_scc1 L_cloop")
    A("  v_mov_b32 v9, v89")
    A("  v_mov_b32 v109, v88")
    A("  s_mov_b32 s57, 0x200000")
    A("  v_permlane32_swap_b32 v89, v9")
    A("  v_add_f32 v89, v89, v9")
    A("  v_mov_b32 v9, v89")
    A("  s_nop 1")
    A("  v_permlane16_swap_b32 v89, v9")
    A("  v_add_f32 v110, v89, v9")
    A("L_tagspin:")
    A("  s_waitcnt vmcnt(0)")
    A("  v_readfirstlane_b32 s56, v90")
    A("  s_cmp_lg_u32 s56, 0")
    A("  s_cbranch_scc1 L_tagok")
    if nohand & 2: A("  s_branch L_tagok")
    A("  buffer_load_dword v90, v92, s[36:39], 0 offen sc1")
    A("  s_sub_u32 s57, s57, 1")
    A("  s_cbranch_scc0 L_tagspin")
    A("L_tagok:")
    A("  v_mov_b32 v99, v90")
    A("  v_mov_b32 v111, v90")
    A("  s_mov_b32 vcc_lo, 0xff00ff00")
    A("  s_mov_b32 vcc_hi, 0xff00ff00")
    A("  s_cmp_lg_u32 s3, s23")
    def polls():
        for k in range(3):
            A("  buffer_load_dwordx4 v[%d:%d], v91, s[48:51], s%d offen sc1" % (12 + 8 * k, 15 + 8 * k, 61 + k))
            A("  buffer_load_dwordx4 v[%d:%d], v91, s[48:51], s%d offen offset:1024 sc1" % (16 + 8 * k, 19 + 8 * k, 61 + k))
    if spec:
        A("  s_cbranch_scc1 L_bar")
        polls()
    A("L_bar:")
    ST(6)
    A("  s_barrier")
    A("  ds_read_b64_tr_b16 v[%d:%d], v104" % (VF, VF + 1))
    A("  ds_read_b64_tr_b16 v[%d:%d], v104 offset:4096" % (VF + 2, VF + 3))
    A("  ds_read_b64_tr_b16 v[%d:%d], v105" % (VF + 4, VF + 5))
    A("  ds_read_b64_tr_b16 v[%d:%d], v105 offset:4096" % (VF + 6, VF + 7))
    A("  s_waitcnt lgkmcnt(2)")
    A("  v_mfma_f32_16x16x32_bf16 v[%d:%d], v[%d:%d], v[%d:%d], v[%d:%d]" % (ACC, ACC + 3, VF, VF + 3, P, P + 3, ACC, ACC + 3))
    A("  s_waitcnt lgkmcnt(0)")
    A("  v_mfma_f32_16x16x32_bf16 v[%d:%d], v[%d:%d], v[%d:%d], v[%d:%d]" % (ACC + 4, ACC + 7, VF + 4, VF + 7, P, P + 3, ACC + 4, ACC + 7))
    A("  s_nop 7")
    for r, d in enumerate([96, 97, 98, 108]):
        A("  v_cndmask_b32 v%d, v%d, v%d, vcc" % (d, ACC + r, ACC + 4 + r))
    A("  s_cbranch_scc0 L_consume")
    A("  buffer_store_dwordx4 v[96:99], v91, s[48:51], s60 offen sc1")
    A("  buffer_store_dwordx4 v[108:111], v91, s[48:51], s60 offen offset:1024 sc1")
    ST(9)
    A("  s_branch L_end")
    A("L_consume:")
    ST(9)
    A("  s_mov_b32 s57, 0x200000")
    if not spec:
        polls()
    A("L_poll:")
    A("  s_waitcnt vmcnt(0)")
    A("  v_xor_b32 v8, v15, v90")
    A("  v_xor_b32 v9, v19, v90")
    A("  v_xor_b32 v10, v23, v90")
    A("  v_or3_b32 v8, v8, v9, v10")
    A("  v_xor_b32 v9, v27, v90")
    A("  v_xor_b32 v10, v31, v90")
    A("  v_or3_b32 v8, v8, v9, v10")
    A("  v_xor_b32 v9, v35, v90")
    A("  v_or_b32 v8, v8, v9")
    A("  v_cmp_ne_u32 vcc, 0, v8")
    A("  s_cbranch_vccz L_pollok")
    if nohand & 4: A("  s_branch L_pollok")
    if sleep:
        A("  s_sleep %d" % sleep)
    polls()
    A("  s_sub_u32 s57, s57, 1")
    A("  s_cbranch_scc0 L_poll")
    A("  s_waitcnt vmcnt(0)")
    A("L_pollok:")
    ST(10)
    A("  v_max3_f32 v8, v109, v17, v25")
    A("  v_max_f32 v8, v8, v33")
    A("  v_sub_f32 v109, v109, v8")
    for k in range(3):
        A("  v_sub_f32 v%d, v%d, v8" % (17 + 8 * k, 17 + 8 * k))
    A("  v_exp_f32 v109, v109")
    for k in range(3):
        A("  v_exp_f32 v%d, v%d" % (17 + 8 * k, 17 + 8 * k))
    A("  v_mul_f32 v110, v109, v110")
    for k in range(3):
        A("  v_fmac_f32 v110, v%d, v%d" % (17 + 8 * k, 18 + 8 * k))
    A("  v_rcp_f32 v110, v110")
    own = [96, 97, 98, 108]
    for r in range(4):
        A("  v_mul_f32 v%d, v109, v%d" % (own[r], own[r]))
    for k in range(3):
        for r in range(4):
            A("  v_fmac_f32 v%d, v%d, v%d" % (own[r], 17 + 8 * k, 12 + 8 * k + (r if r < 3 else 4)))
    for r in range(4):
        A("  v_mul_f32 v%d, v110, v%d" % (own[r], own[r]))
    A("  v_cvt_pk_bf16_f32 v96, v96, v97")
    A("  v_cvt_pk_bf16_f32 v97, v98, v108")
    A("  buffer_store_dwordx2 v[96:97], v93, s[40:43], 0 offen")
    if stamps:
        A("L_end:")
        A("  s_waitcnt vmcnt(0)")
        ST(11)
        A("  s_add_u32 s24, s20, 0x8000000")
        A("  s_addc_u32 s25, s21, 0")
        A("  s_mov_b32 s26, 0x100000")
        A("  s_mov_b32 s27, 0x20000")
        A("  s_getreg_b32 s58, hwreg(HW_REG_HW_ID)")
        A("  s_mul_i32 s56, s2, %d" % W)
        A("  v_readfirstlane_b32 s57, v127")
        A("  s_add_u32 s56, s56, s57")
        A("  s_lshl_b32 s56, s56, 7")
        A("  s_mov_b64 exec, 1")
        A("  v_mov_b32 v1, 0")
        for i in range(12):
            A("  v_mov_b32 v2, s%d" % (64 + 2 * i))
            A("  v_mov_b32 v3, s%d" % (65 + 2 * i))
            A("  buffer_store_dwordx2 v[2:3], v1, s[24:27], s56 offen offset:%d" % (8 * i))
            A("  s_nop 1")
        A("  s_getreg_b32 s57, hwreg(HW_REG_XCC_ID)")
        A("  v_mov_b32 v2, s57")
        A("  v_mov_b32 v3, s58")
        A("  buffer_store_dwordx2 v[2:3], v1, s[24:27], s56 offen offset:120")
    else:
        A("L_end:")
    A("L_exit:")
    A("  s_endpgm")
    if nocomp:
        i0 = L.index("L_cloop:"); i1 = L.index("L_nodrain:")
        L[i0:i1] = [x for x in L[i0:i1] if not (x.startswith("  v_mfma") or x.startswith("  ds_") or x.startswith("  v_exp") or x.startswith("  v_fma") or x.startswith("  v_add_f32") or x.startswith("  v_cvt") or x.startswith("  v_mul_f32"))]
    if nobar:
        L[:] = [x for x in L if x != "  s_barrier"]
    footer(L, 136 if stamps else 128, 96 if stamps else 64)
    s = "\n".join(L) + "\n"
    if stamps:
        s = s.replace("  v_and_b32 v0, 63, v0\n", "  v_and_b32 v0, 63, v0\n  v_mov_b32 v128, v1\n", 1).replace("s57, v127", "s57, v128")
    return s

if __name__ == "__main__":
    for a in sys.argv[1:]:
        name, _, kv = a.partition(":")
        kw = {}
        for x in kv.split(","):
            if not x: continue
            k, v = x.split("=")
            kw[k] = int(v)
        open(name, "w").write(gen(**kw))
```

```python
import sys, math, struct
from gen2 import header, footer, f2u, NAME

def gen(nt=1, mapmode=0, stamps=0, N=18, sleep=1, it1=3, it2=6, chkit=24, spec=1, lprio=3, ldsx=0, nohand=0, nocomp=0, nobar=0, outsc=0):
    L = []; A = L.append
    NT = " nt" if nt else ""
    W = 5
    def ST(i):
        if stamps:
            A("  s_memrealtime s[%d:%d]" % (64 + 2 * i, 65 + 2 * i))
            A("  s_waitcnt lgkmcnt(0)")
    QL = 65536
    header(L, "; @launch grid=(256,1,1) block=(320,1,1) lds=%d" % (QL + 4096 + ldsx))
    A("  s_cmp_ge_u32 s2, 256")
    A("  s_cbranch_scc1 L_exit")
    if stamps:
        for i in range(1, 12):
            A("  s_mov_b64 s[%d:%d], 0" % (64 + 2 * i, 65 + 2 * i))
        A("  s_memrealtime s[64:65]")
    A("  s_load_dwordx16 s[4:19], s[0:1], 0")
    A("  s_load_dwordx2 s[20:21], s[0:1], 64")
    A("  v_lshrrev_b32 v1, 6, v0")
    A("  v_and_b32 v0, 63, v0")
    A("  v_readfirstlane_b32 s3, v1")
    if mapmode == 0:
        A("  s_lshr_b32 s22, s2, 2")
        A("  s_and_b32 s23, s2, 3")
        A("  s_lshl_b32 s56, s2, 18")
    else:
        if mapmode == 1:
            A("  s_and_b32 s22, s2, 63")
            A("  s_lshr_b32 s23, s2, 6")
        else:
            A("  s_lshr_b32 s22, s2, 3")
            A("  s_and_b32 s23, s2, 1")
            A("  s_lshl1_add_u32 s22, s22, s23")
            A("  s_bfe_u32 s23, s2, 0x20001")
        A("  s_lshl_b32 s56, s22, 20")
        A("  s_lshl_b32 s57, s23, 18")
        A("  s_add_u32 s56, s56, s57")
    A("  v_lshrrev_b32 v8, 4, v0")
    A("  v_and_b32 v9, 15, v0")
    A("  s_cmp_lg_u32 s3, 0")
    A("  s_cbranch_scc1 L_cons")
    if lprio:
        A("  s_setprio %d" % lprio)
    A("  v_xor_b32 v1, v9, v8")
    A("  v_lshlrev_b32 v1, 4, v1")
    A("  v_lshl_add_u32 v1, v8, 8, v1")
    A("  v_xor_b32 v2, 64, v1")
    A("  v_xor_b32 v3, 0x80, v1")
    A("  v_xor_b32 v4, 0xc0, v1")
    A("  v_lshlrev_b32 v5, 1, v8")
    A("  v_xor_b32 v5, v9, v5")
    A("  v_lshlrev_b32 v5, 4, v5")
    A("  v_lshl_add_u32 v5, v8, 8, v5")
    A("  v_xor_b32 v6, 0x80, v5")
    A("  v_lshlrev_b32 v7, 4, v0")
    A("  s_mov_b32 s26, 0x40000")
    A("  s_mov_b32 s27, 0x20000")
    A("  s_mov_b32 s30, 0x40000")
    A("  s_mov_b32 s31, 0x20000")
    A("  s_lshl_b32 s57, s22, 11")
    A("  s_movk_i32 s34, 2048")
    A("  s_mov_b32 s35, 0x20000")
    A("  s_movk_i32 s45, 0x1000")
    A("  s_mov_b32 m0, 0")
    A("  s_waitcnt lgkmcnt(0)")
    ST(1)
    A("  s_add_u32 s24, s6, s56")
    A("  s_addc_u32 s25, s7, 0")
    def kunit(soff, wait):
        for i in range(4):
            wait(i)
            A("  buffer_load_dwordx4 v%d, s[24:27], %s offen offset:%d%s lds" % (1 + i, soff, 1024 * i, NT))
    def vunit(soff, wait):
        for i in range(4):
            wait(i)
            A("  buffer_load_dwordx4 v%d, s[28:31], %s offen offset:%d%s lds" % (5 + (i & 1), soff, 1024 * i, NT))
    now = lambda i: None
    kunit("0", now)
    A("  s_mov_b32 m0, s45")
    A("  s_add_u32 s32, s4, s57")
    A("  s_addc_u32 s33, s5, 0")
    kunit("s45", now)
    A("  s_mov_b32 m0, %d" % QL)
    A("  s_add_u32 s28, s8, s56")
    A("  s_addc_u32 s29, s9, 0")
    A("  buffer_load_dwordx4 v7, s[32:35], 0 offen lds")
    A("  buffer_load_dwordx4 v7, s[32:35], 0 offen offset:1024 lds")
    A("  s_cmp_lg_u32 s23, 0")
    A("  s_cbranch_scc1 L_notreeld")
    A("  s_lshl_b32 s57, s22, 8")
    A("  s_add_u32 s36, s10, s57")
    A("  s_addc_u32 s37, s11, 0")
    A("  s_movk_i32 s38, 256")
    A("  s_mov_b32 s39, 0x20000")
    A("  s_add_u32 s40, s12, s57")
    A("  s_addc_u32 s41, s13, 0")
    A("  s_mov_b32 m0, %d" % (QL + 2048))
    A("  s_movk_i32 s42, 256")
    A("  s_mov_b32 s43, 0x20000")
    A("  buffer_load_dwordx4 v7, s[36:39], 0 offen lds")
    A("  s_mov_b32 m0, %d" % (QL + 3072))
    A("  s_nop 0")
    A("  buffer_load_dwordx4 v7, s[40:43], 0 offen lds")
    A("L_notreeld:")
    lag = 1 + (N - 1) // 16
    p = (N - 1) % 16
    assert lag in (1, 2)
    A("  s_mov_b32 s44, 1")
    A("  s_movk_i32 s45, 0x2000")
    A("  s_mov_b32 s46, 0")
    A("  s_movk_i32 s47, 0x4000")
    A("L_lloop:")
    def mkwait(base, cond):
        def w(i):
            A("  s_waitcnt vmcnt(%d)" % (N - 1))
            if base + i == p:
                if cond and lag == 2:
                    A("  s_cmp_eq_u32 s44, 1")
                    A("  s_cbranch_scc1 L_nobar")
                    A("  s_barrier")
                    A("L_nobar:")
                else:
                    A("  s_barrier")
        return w
    A("  s_mov_b32 m0, s47")
    kunit("s45", mkwait(0, True))
    A("  s_add_u32 m0, s47, 0x1000")
    A("  s_add_u32 s48, s45, 0x1000")
    kunit("s48", mkwait(4, True))
    A("  s_add_u32 m0, s47, 0x2000")
    A("  s_add_u32 s45, s45, 0x2000")
    vunit("s46", mkwait(8, True))
    A("  s_add_u32 m0, s47, 0x3000")
    A("  s_add_u32 s48, s46, 0x1000")
    vunit("s48", mkwait(12, True))
    A("  s_add_u32 s46, s46, 0x2000")
    A("  s_add_u32 s47, s47, 0x4000")
    A("  s_and_b32 s47, s47, 0xffff")
    A("  s_add_u32 s44, s44, 1")
    A("  s_cmp_lt_u32 s44, 32")
    A("  s_cbranch_scc1 L_lloop")
    A("  s_movk_i32 s48, 0x2000")
    A("  s_mov_b32 m0, s48")
    vunit("s46", mkwait(0, False))
    A("  s_movk_i32 s48, 0x3000")
    A("  s_mov_b32 m0, s48")
    A("  s_add_u32 s48, s46, 0x1000")
    vunit("s48", mkwait(4, False))
    nb = 32 - lag + (1 if p < 8 else 0)
    ST(2)
    for b in range(nb, 33):
        rem = 0 if b == 32 else 16 * (31 - b) + 8
        A("  s_waitcnt vmcnt(%d)" % rem)
        if b == 32: ST(3)
        A("  s_barrier")
    A("  s_branch L_end")
    A("L_cons:")
    Q, S, P, KF, VF, ACC = 12, 28, 36, 40, 72, 80
    A("  s_sub_u32 s3, s3, 1")
    A("  v_xor_b32 v1, v8, v9")
    A("  v_lshlrev_b32 v1, 4, v1")
    A("  v_lshl_add_u32 v1, v9, 8, v1")
    A("  v_xor_b32 v2, 64, v1")
    A("  v_xor_b32 v3, 0x80, v1")
    A("  v_xor_b32 v4, 0xc0, v1")
    A("  v_bfe_u32 v5, v0, 2, 4")
    A("  v_and_b32 v6, 7, v5")
    A("  v_lshlrev_b32 v6, 1, v6")
    A("  v_bfe_u32 v7, v0, 1, 1")
    A("  s_lshl_b32 s57, s3, 2")
    A("  v_add_u32 v7, s57, v7")
    A("  v_xor_b32 v6, v6, v7")
    A("  v_lshlrev_b32 v6, 4, v6")
    A("  v_lshl_add_u32 v5, v5, 8, v6")
    A("  v_and_b32 v6, 1, v0")
    A("  v_lshl_add_u32 v5, v6, 3, v5")
    A("  v_add_u32 v5, 0x2000, v5")
    A("  v_xor_b32 v6, 32, v5")
    A("  v_and_b32 v7, 7, v0")
    A("  v_lshlrev_b32 v7, 8, v7")
    A("  v_lshlrev_b32 v10, 4, v8")
    A("  v_lshlrev_b32 v11, 3, v8")
    A("  s_lshl_b32 s57, s3, 6")
    A("  v_add_u32 v11, s57, v11")
    A("  v_bfe_u32 v93, v0, 3, 1")
    A("  v_lshl_add_u32 v93, v93, 5, v11")
    A("  v_add_u32 v93, v93, v7")
    A("  v_add_u32 v10, %d, v10" % QL)
    A("  v_add_u32 v11, %d, v11" % QL)
    A("  v_add_u32 v7, v7, v10")
    A("  v_lshlrev_b32 v91, 4, v0")
    c = (128 ** -0.5) * math.log2(math.e)
    A("  s_mov_b32 s53, 0x%08x" % f2u(c))
    A("  v_mov_b32 v88, 0xff800000")
    A("  v_mov_b32 v89, 0")
    for i in range(4):
        A("  v_mov_b64 v[%d:%d], 0" % (ACC + 2 * i, ACC + 2 * i + 1))
    A("  v_mov_b32 v90, 0")
    A("  v_mov_b32 v92, 0")
    A("  s_waitcnt lgkmcnt(0)")
    A("  s_lshl_b32 s56, s22, 15")
    A("  s_add_u32 s48, s20, s56")
    A("  s_addc_u32 s49, s21, 0")
    A("  s_mov_b32 s50, 0x8000")
    A("  s_mov_b32 s51, 0x20000")
    A("  s_mov_b32 s36, s18")
    A("  s_mov_b32 s37, s19")
    A("  s_movk_i32 s38, 256")
    A("  s_mov_b32 s39, 0x20000")
    A("  s_lshl_b32 s56, s22, 11")
    A("  s_add_u32 s40, s16, s56")
    A("  s_addc_u32 s41, s17, 0")
    A("  s_movk_i32 s42, 2048")
    A("  s_mov_b32 s43, 0x20000")
    A("  s_lshr_b32 s58, s22, 2")
    A("  s_lshl_b32 s57, s58, 1")
    A("  s_and_b32 s57, s57, 0xfffffffc")
    A("  s_load_dword s54, s[14:15], s57")
    A("  s_lshl_b32 s57, s3, 13")
    A("  s_lshl_b32 s56, s23, 11")
    A("  s_add_u32 s60, s56, s57")
    A("  s_lshl_b32 s57, s23, 13")
    for k in range(1, 4):
        A("  s_add_u32 s56, s23, %d" % k)
        A("  s_and_b32 s56, s56, 3")
        A("  s_lshl_b32 s56, s56, 11")
        A("  s_add_u32 s%d, s56, s57" % (60 + k))
    A("  s_add_u32 s24, s20, 0x200000")
    A("  s_addc_u32 s25, s21, 0")
    A("  s_movk_i32 s26, 64")
    A("  s_mov_b32 s27, 0x20000")
    A("  s_xor_b32 s56, s3, 3")
    A("  s_or_b32 s56, s56, s2")
    A("  s_cselect_b32 s44, -1, %d" % it1)
    A("  s_cselect_b32 s45, -1, %d" % it2)
    A("  s_cbranch_scc1 L_notag0")
    A("  buffer_load_dword v94, v92, s[24:27], 0 offen sc1")
    A("L_notag0:")
    A("  s_waitcnt lgkmcnt(0)")
    A("  s_barrier")
    ST(4)
    for j in range(4):
        A("  ds_read_b128 v[%d:%d], v7 offset:%d" % (Q + 4 * j, Q + 3 + 4 * j, 64 * j))
    def kreads(regs):
        for u in range(2):
            for j in range(4):
                r = KF + 16 * u + 4 * j
                A("  ds_read_b128 v[%d:%d], v%d offset:%d" % (r, r + 3, regs[j], 4096 * u))
    kreads([1, 2, 3, 4])
    A("  s_cmp_lg_u32 s23, 0")
    A("  s_cbranch_scc1 L_notree")
    A("  s_waitcnt lgkmcnt(0)")
    for j in range(4):
        A("  ds_read_b128 v[%d:%d], v10 offset:%d" % (100 + 4 * j, 103 + 4 * j, 2048 + 64 * j))
    A("  ds_read_b64 v[116:117], v11 offset:%d" % (3072))
    A("  ds_read_b64 v[118:119], v11 offset:%d" % (3072 + 32))
    A("  s_and_b32 s58, s58, 1")
    A("  s_lshl_b32 s58, s58, 4")
    A("  s_lshr_b32 s54, s54, s58")
    A("  s_lshl_b32 s54, s54, 16")
    A("  v_sub_f32 v120, 1.0, s54")
    A("  s_mov_b32 s55, 0x%08x" % f2u(-1e9 * math.log2(math.e)))
    A("  v_mul_f32 v120, s55, v120")
    A("  v_mov_b32 v89, 0x3e800000")
    A("  s_waitcnt lgkmcnt(0)")
    for j in range(4):
        cc = "0" if j == 0 else "v[124:127]"
        A("  v_mfma_f32_16x16x32_bf16 v[124:127], v[%d:%d], v[%d:%d], %s" % (100 + 4 * j, 103 + 4 * j, Q + 4 * j, Q + 3 + 4 * j, cc))
    for a in range(2):
        A("  v_lshlrev_b32 v%d, 16, v%d" % (ACC + 4 * a, 116 + 2 * a))
        A("  v_and_b32 v%d, 0xffff0000, v%d" % (ACC + 4 * a + 1, 116 + 2 * a))
        A("  v_lshlrev_b32 v%d, 16, v%d" % (ACC + 4 * a + 2, 117 + 2 * a))
        A("  v_and_b32 v%d, 0xffff0000, v%d" % (ACC + 4 * a + 3, 117 + 2 * a))
    A("  s_nop 1")
    A("  v_fma_f32 v88, v124, s53, v120")
    A("L_notree:")
    A("  s_mov_b32 s47, 0")
    A("  s_mov_b32 s52, 0")
    A("  s_waitcnt lgkmcnt(0)")
    A("  s_branch L_qk")
    A("L_cloop:")
    A("  s_barrier")
    A("  ds_read_b64_tr_b16 v[%d:%d], v104" % (VF, VF + 1))
    A("  ds_read_b64_tr_b16 v[%d:%d], v104 offset:4096" % (VF + 2, VF + 3))
    A("  ds_read_b64_tr_b16 v[%d:%d], v105" % (VF + 4, VF + 5))
    A("  ds_read_b64_tr_b16 v[%d:%d], v105 offset:4096" % (VF + 6, VF + 7))
    kreads([100, 101, 102, 103])
    A("  s_waitcnt lgkmcnt(10)")
    A("  v_mfma_f32_16x16x32_bf16 v[%d:%d], v[%d:%d], v[%d:%d], v[%d:%d]" % (ACC, ACC + 3, VF, VF + 3, P, P + 3, ACC, ACC + 3))
    A("  s_waitcnt lgkmcnt(8)")
    A("  v_mfma_f32_16x16x32_bf16 v[%d:%d], v[%d:%d], v[%d:%d], v[%d:%d]" % (ACC + 4, ACC + 7, VF + 4, VF + 7, P, P + 3, ACC + 4, ACC + 7))
    A("L_qk:")
    for u in range(2):
        for j in range(4):
            d = S + 4 * u
            a = KF + 16 * u + 4 * j
            cc = "0" if j == 0 else "v[%d:%d]" % (d, d + 3)
            A("  s_waitcnt lgkmcnt(%d)" % (7 - 4 * u - j))
            A("  v_mfma_f32_16x16x32_bf16 v[%d:%d], v[%d:%d], v[%d:%d], %s" % (d, d + 3, a, a + 3, Q + 4 * j, Q + 3 + 4 * j, cc))
    A("  s_add_u32 s52, s52, 0x4000")
    A("  s_and_b32 s52, s52, 0xffff")
    for k in range(6):
        A("  v_add_u32 v%d, s52, v%d" % (100 + k, 1 + k))
    A("  s_add_u32 s47, s47, 1")
    A("  v_max3_f32 v8, v%d, v%d, v%d" % (S, S + 1, S + 2))
    A("  v_max3_f32 v8, v8, v%d, v%d" % (S + 3, S + 4))
    A("  v_max3_f32 v8, v8, v%d, v%d" % (S + 5, S + 6))
    A("  v_max_f32 v8, v8, v%d" % (S + 7))
    A("  v_mul_f32 v8, s53, v8")
    A("  v_cmp_gt_f32 vcc, v8, v88")
    A("  s_cbranch_vccz L_skip")
    A("  v_mov_b32 v9, v8")
    A("  s_nop 1")
    A("  v_permlane32_swap_b32 v8, v9")
    A("  v_max_f32 v8, v8, v9")
    A("  v_mov_b32 v9, v8")
    A("  s_nop 1")
    A("  v_permlane16_swap_b32 v8, v9")
    A("  v_max3_f32 v8, v8, v9, v88")
    A("  v_sub_f32 v9, v88, v8")
    A("  v_exp_f32 v9, v9")
    A("  v_mov_b32 v88, v8")
    A("  v_mul_f32 v89, v89, v9")
    for i in range(8):
        A("  v_mul_f32 v%d, v%d, v9" % (ACC + i, ACC + i))
    A("L_skip:")
    for i in range(8):
        A("  v_fma_f32 v%d, v%d, s53, -v88" % (S + i, S + i))
    for i in range(8):
        A("  v_exp_f32 v%d, v%d" % (S + i, S + i))
    for m in range(4):
        A("  v_cvt_pk_bf16_f32 v%d, v%d, v%d" % (P + m, S + 2 * m, S + 1 + 2 * m))
    for i in range(8):
        A("  v_add_f32 v89, v89, v%d" % (S + i))
    A("  s_cmp_eq_u32 s47, s44")
    A("  s_cbranch_scc0 L_not1")
    A("  s_waitcnt vmcnt(0)")
    A("  v_add_u32 v94, 1, v94")
    A("  v_max_u32 v94, 1, v94")
    A("  s_mov_b64 exec, 1")
    A("  buffer_store_dword v94, v92, s[24:27], 0 offen sc1")
    A("  s_mov_b64 exec, -1")
    A("L_not1:")
    A("  s_cmp_eq_u32 s47, s45")
    A("  s_cbranch_scc0 L_not2")
    A("  s_waitcnt vmcnt(0)")
    A("  s_mov_b64 exec, 1")
    A("  buffer_store_dword v94, v92, s[36:39], 0 offen sc1")
    A("  s_mov_b64 exec, -1")
    A("L_not2:")
    A("  s_cmp_eq_u32 s47, %d" % chkit)
    A("  s_cbranch_scc0 L_nochk")
    A("  buffer_load_dword v90, v92, s[36:39], 0 offen")
    A("L_nochk:")
    A("L_nodrain:")
    A("  s_cmp_lt_u32 s47, 32")
    A("  s_cbranch_scc1 L_cloop")
    A("  v_mov_b32 v9, v89")
    A("  v_mov_b32 v109, v88")
    A("  s_mov_b32 s57, 0x200000")
    A("  v_permlane32_swap_b32 v89, v9")
    A("  v_add_f32 v89, v89, v9")
    A("  v_mov_b32 v9, v89")
    A("  s_nop 1")
    A("  v_permlane16_swap_b32 v89, v9")
    A("  v_add_f32 v110, v89, v9")
    A("L_tagspin:")
    A("  s_waitcnt vmcnt(0)")
    A("  v_readfirstlane_b32 s56, v90")
    A("  s_cmp_lg_u32 s56, 0")
    A("  s_cbranch_scc1 L_tagok")
    if nohand & 2: A("  s_branch L_tagok")
    A("  buffer_load_dword v90, v92, s[36:39], 0 offen sc1")
    A("  s_sub_u32 s57, s57, 1")
    A("  s_cbranch_scc0 L_tagspin")
    A("L_tagok:")
    A("  v_mov_b32 v99, v90")
    A("  v_mov_b32 v111, v90")
    A("  s_mov_b32 vcc_lo, 0xff00ff00")
    A("  s_mov_b32 vcc_hi, 0xff00ff00")
    A("  s_cmp_lg_u32 s3, s23")
    def polls():
        for k in range(3):
            A("  buffer_load_dwordx4 v[%d:%d], v91, s[48:51], s%d offen sc1" % (12 + 8 * k, 15 + 8 * k, 61 + k))
            A("  buffer_load_dwordx4 v[%d:%d], v91, s[48:51], s%d offen offset:1024 sc1" % (16 + 8 * k, 19 + 8 * k, 61 + k))
    if spec:
        A("  s_cbranch_scc1 L_bar")
        polls()
    A("L_bar:")
    ST(6)
    A("  s_barrier")
    A("  ds_read_b64_tr_b16 v[%d:%d], v104" % (VF, VF + 1))
    A("  ds_read_b64_tr_b16 v[%d:%d], v104 offset:4096" % (VF + 2, VF + 3))
    A("  ds_read_b64_tr_b16 v[%d:%d], v105" % (VF + 4, VF + 5))
    A("  ds_read_b64_tr_b16 v[%d:%d], v105 offset:4096" % (VF + 6, VF + 7))
    A("  s_waitcnt lgkmcnt(2)")
    A("  v_mfma_f32_16x16x32_bf16 v[%d:%d], v[%d:%d], v[%d:%d], v[%d:%d]" % (ACC, ACC + 3, VF, VF + 3, P, P + 3, ACC, ACC + 3))
    A("  s_waitcnt lgkmcnt(0)")
    A("  v_mfma_f32_16x16x32_bf16 v[%d:%d], v[%d:%d], v[%d:%d], v[%d:%d]" % (ACC + 4, ACC + 7, VF + 4, VF + 7, P, P + 3, ACC + 4, ACC + 7))
    A("  s_nop 7")
    for r, d in enumerate([96, 97, 98, 108]):
        A("  v_cndmask_b32 v%d, v%d, v%d, vcc" % (d, ACC + r, ACC + 4 + r))
    A("  s_cbranch_scc0 L_consume")
    A("  buffer_store_dwordx4 v[96:99], v91, s[48:51], s60 offen sc1")
    A("  buffer_store_dwordx4 v[108:111], v91, s[48:51], s60 offen offset:1024 sc1")
    ST(9)
    A("  s_branch L_end")
    A("L_consume:")
    ST(9)
    A("  s_mov_b32 s57, 0x200000")
    if not spec:
        polls()
    A("L_poll:")
    A("  s_waitcnt vmcnt(0)")
    A("  v_xor_b32 v8, v15, v90")
    A("  v_xor_b32 v9, v19, v90")
    A("  v_xor_b32 v10, v23, v90")
    A("  v_or3_b32 v8, v8, v9, v10")
    A("  v_xor_b32 v9, v27, v90")
    A("  v_xor_b32 v10, v31, v90")
    A("  v_or3_b32 v8, v8, v9, v10")
    A("  v_xor_b32 v9, v35, v90")
    A("  v_or_b32 v8, v8, v9")
    A("  v_cmp_ne_u32 vcc, 0, v8")
    A("  s_cbranch_vccz L_pollok")
    if nohand & 4: A("  s_branch L_pollok")
    if sleep:
        A("  s_sleep %d" % sleep)
    polls()
    A("  s_sub_u32 s57, s57, 1")
    A("  s_cbranch_scc0 L_poll")
    A("  s_waitcnt vmcnt(0)")
    A("L_pollok:")
    ST(10)
    A("  v_max3_f32 v8, v109, v17, v25")
    A("  v_max_f32 v8, v8, v33")
    A("  v_sub_f32 v109, v109, v8")
    for k in range(3):
        A("  v_sub_f32 v%d, v%d, v8" % (17 + 8 * k, 17 + 8 * k))
    A("  v_exp_f32 v109, v109")
    for k in range(3):
        A("  v_exp_f32 v%d, v%d" % (17 + 8 * k, 17 + 8 * k))
    A("  v_mul_f32 v110, v109, v110")
    for k in range(3):
        A("  v_fmac_f32 v110, v%d, v%d" % (17 + 8 * k, 18 + 8 * k))
    A("  v_rcp_f32 v110, v110")
    own = [96, 97, 98, 108]
    for r in range(4):
        A("  v_mul_f32 v%d, v109, v%d" % (own[r], own[r]))
    for k in range(3):
        for r in range(4):
            A("  v_fmac_f32 v%d, v%d, v%d" % (own[r], 17 + 8 * k, 12 + 8 * k + (r if r < 3 else 4)))
    for r in range(4):
        A("  v_mul_f32 v%d, v110, v%d" % (own[r], own[r]))
    A("  v_cvt_pk_bf16_f32 v96, v96, v97")
    A("  v_cvt_pk_bf16_f32 v97, v98, v108")
    A("  buffer_store_dwordx2 v[96:97], v93, s[40:43], 0 offen%s" % ["", " sc1", " nt", " sc0 sc1"][outsc])
    if stamps:
        A("L_end:")
        A("  s_waitcnt vmcnt(0)")
        ST(11)
        A("  s_add_u32 s24, s20, 0x8000000")
        A("  s_addc_u32 s25, s21, 0")
        A("  s_mov_b32 s26, 0x100000")
        A("  s_mov_b32 s27, 0x20000")
        A("  s_getreg_b32 s58, hwreg(HW_REG_HW_ID)")
        A("  s_mul_i32 s56, s2, %d" % W)
        A("  v_readfirstlane_b32 s57, v127")
        A("  s_add_u32 s56, s56, s57")
        A("  s_lshl_b32 s56, s56, 7")
        A("  s_mov_b64 exec, 1")
        A("  v_mov_b32 v1, 0")
        for i in range(12):
            A("  v_mov_b32 v2, s%d" % (64 + 2 * i))
            A("  v_mov_b32 v3, s%d" % (65 + 2 * i))
            A("  buffer_store_dwordx2 v[2:3], v1, s[24:27], s56 offen offset:%d" % (8 * i))
            A("  s_nop 1")
        A("  s_getreg_b32 s57, hwreg(HW_REG_XCC_ID)")
        A("  v_mov_b32 v2, s57")
        A("  v_mov_b32 v3, s58")
        A("  buffer_store_dwordx2 v[2:3], v1, s[24:27], s56 offen offset:120")
    else:
        A("L_end:")
    A("L_exit:")
    A("  s_endpgm")
    if nocomp:
        i0 = L.index("L_cloop:"); i1 = L.index("L_nodrain:")
        L[i0:i1] = [x for x in L[i0:i1] if not (x.startswith("  v_mfma") or x.startswith("  ds_") or x.startswith("  v_exp") or x.startswith("  v_fma") or x.startswith("  v_add_f32") or x.startswith("  v_cvt") or x.startswith("  v_mul_f32"))]
    if nobar:
        L[:] = [x for x in L if x != "  s_barrier"]
    footer(L, 136 if stamps else 128, 96 if stamps else 64)
    s = "\n".join(L) + "\n"
    if stamps:
        s = s.replace("  v_and_b32 v0, 63, v0\n", "  v_and_b32 v0, 63, v0\n  v_mov_b32 v128, v1\n", 1).replace("s57, v127", "s57, v128")
    return s

if __name__ == "__main__":
    for a in sys.argv[1:]:
        name, _, kv = a.partition(":")
        kw = {}
        for x in kv.split(","):
            if not x: continue
            k, v = x.split("=")
            kw[k] = int(v)
        open(name, "w").write(gen(**kw))
```

```python
import sys, math, struct
from gen2 import header, footer, f2u, NAME

def gen(nt=1, mapmode=2, stamps=0, N=18, sleep=1, it1=3, it2=6, chkit=14, spec=1, lprio=3, GS=28, outsc=0, lay=1, fake=0, kx=0):
    L = []; A = L.append
    NT = " nt" if nt else ""
    W = 5
    POOL = 128 - 4 * GS
    dyn = POOL > 0
    def ST(i):
        if stamps:
            A("  s_memrealtime s[%d:%d]" % (64 + 2 * i, 65 + 2 * i))
            A("  s_waitcnt lgkmcnt(0)")
    QL = 65536
    header(L, "; @launch grid=(256,1,1) block=(320,1,1) lds=%d" % (QL + 4096 + 64))
    A("  s_cmp_ge_u32 s2, 256")
    A("  s_cbranch_scc1 L_exit")
    if stamps:
        for i in range(1, 12):
            A("  s_mov_b64 s[%d:%d], 0" % (64 + 2 * i, 65 + 2 * i))
        A("  s_memrealtime s[64:65]")
    A("  s_load_dwordx16 s[4:19], s[0:1], 0")
    A("  s_load_dwordx2 s[20:21], s[0:1], 64")
    A("  v_lshrrev_b32 v1, 6, v0")
    A("  v_and_b32 v0, 63, v0")
    A("  v_readfirstlane_b32 s3, v1")
    if mapmode == 0:
        A("  s_lshr_b32 s22, s2, 2")
        A("  s_and_b32 s23, s2, 3")
    elif mapmode == 1:
        A("  s_and_b32 s22, s2, 63")
        A("  s_lshr_b32 s23, s2, 6")
    else:
        A("  s_lshr_b32 s22, s2, 3")
        A("  s_and_b32 s23, s2, 1")
        A("  s_lshl1_add_u32 s22, s22, s23")
        A("  s_bfe_u32 s23, s2, 0x20001")
    A("  v_lshrrev_b32 v8, 4, v0")
    A("  v_and_b32 v9, 15, v0")
    A("  s_cmp_lg_u32 s3, 0")
    A("  s_cbranch_scc1 L_cons")
    if lprio:
        A("  s_setprio %d" % lprio)
    A("  v_xor_b32 v1, v9, v8")
    A("  v_lshlrev_b32 v1, 4, v1")
    A("  v_lshl_add_u32 v1, v8, 8, v1")
    A("  v_xor_b32 v2, 64, v1")
    A("  v_xor_b32 v3, 0x80, v1")
    A("  v_xor_b32 v4, 0xc0, v1")
    A("  s_lshl_b32 s56, s22, 20")
    A("  s_mul_i32 s46, s23, %d" % ((GS if lay == 0 else 32) * 8192))
    if kx:
        A("  s_lshr_b32 s52, s2, 5")
        A("  s_lshl_b32 s52, s52, 12")
        A("  s_mov_b32 s45, s46")
        A("  s_xor_b32 s46, s46, s52")
    A("  s_mov_b32 s26, 0x100000")
    A("  s_mov_b32 s27, 0x20000")
    A("  s_xor_b32 s48, s46, 0x1000")
    A("  s_mov_b32 m0, 0")
    A("  v_lshlrev_b32 v5, 1, v8")
    A("  v_xor_b32 v5, v9, v5")
    A("  v_lshlrev_b32 v5, 4, v5")
    A("  v_lshl_add_u32 v5, v8, 8, v5")
    A("  v_xor_b32 v6, 0x80, v5")
    A("  v_lshlrev_b32 v7, 4, v0")
    A("  s_mov_b32 s30, 0x100000")
    A("  s_mov_b32 s31, 0x20000")
    A("  s_lshl_b32 s57, s22, 11")
    A("  s_movk_i32 s34, 2048")
    A("  s_mov_b32 s35, 0x20000")
    A("  s_waitcnt lgkmcnt(0)")
    ST(1)
    A("  s_add_u32 s24, s6, s56")
    A("  s_addc_u32 s25, s7, 0")
    def kunit(soff, wait):
        for i in range(4):
            wait(i)
            A("  buffer_load_dwordx4 v%d, s[24:27], %s offen offset:%d%s lds" % (1 + i, soff, 1024 * i, NT))
    def vunit(soff, wait):
        for i in range(4):
            wait(i)
            A("  buffer_load_dwordx4 v%d, s[28:31], %s offen offset:%d%s lds" % (5 + (i & 1), soff, 1024 * i, NT))
    now = lambda i: None
    kunit("s46", now)
    A("  s_mov_b32 m0, 0x1000")
    A("  s_add_u32 s32, s4, s57")
    A("  s_addc_u32 s33, s5, 0")
    kunit("s48", now)
    A("  s_mov_b32 m0, %d" % QL)
    A("  s_add_u32 s28, s8, s56")
    A("  s_addc_u32 s29, s9, 0")
    A("  buffer_load_dwordx4 v7, s[32:35], 0 offen lds")
    A("  buffer_load_dwordx4 v7, s[32:35], 0 offen offset:1024 lds")
    A("  s_cmp_lg_u32 s23, 0")
    A("  s_cbranch_scc1 L_notreeld")
    A("  s_lshl_b32 s57, s22, 8")
    A("  s_add_u32 s36, s10, s57")
    A("  s_addc_u32 s37, s11, 0")
    A("  s_movk_i32 s38, 256")
    A("  s_mov_b32 s39, 0x20000")
    A("  s_add_u32 s40, s12, s57")
    A("  s_addc_u32 s41, s13, 0")
    A("  s_mov_b32 m0, %d" % (QL + 2048))
    A("  s_movk_i32 s42, 256")
    A("  s_mov_b32 s43, 0x20000")
    A("  buffer_load_dwordx4 v7, s[36:39], 0 offen lds")
    A("  s_mov_b32 m0, %d" % (QL + 3072))
    A("  s_nop 0")
    A("  buffer_load_dwordx4 v7, s[40:43], 0 offen lds")
    A("L_notreeld:")
    lag = 1 + (N - 1) // 16
    p = (N - 1) % 16
    assert lag == 2 and N <= 32
    A("  s_mov_b32 s44, 1")
    A("  s_movk_i32 s47, 0x4000")
    if dyn:
        A("  v_mov_b32 v10, %d" % (QL + 4096))
        A("  v_mov_b32 v11, -1")
        A("  ds_write_b32 v10, v11")
        A("  s_lshl_b32 s57, s22, 8")
        A("  s_add_u32 s57, s57, 0x210000")
        A("  s_add_u32 s40, s20, s57")
        A("  s_addc_u32 s41, s21, 0")
        A("  s_waitcnt lgkmcnt(0)")
    A("L_lloop:")
    if kx:
        assert not dyn
        A("  s_add_u32 s45, s45, 0x2000")
        A("  s_xor_b32 s49, s45, s52")
    else:
        A("  s_add_u32 s49, s46, 0x2000")
    if dyn:
        A("  s_cmp_lt_u32 s44, %d" % (GS - 2))
        A("  s_cbranch_scc0 L_dyn")
        A("L_go:")
    def mkwait(base, cond):
        def w(i):
            A("  s_waitcnt vmcnt(%d)" % (N - 1))
            if base + i == p:
                if cond:
                    A("  s_cmp_eq_u32 s44, 1")
                    A("  s_cbranch_scc1 L_nobar")
                    A("  s_barrier")
                    A("L_nobar:")
                else:
                    A("  s_barrier")
        return w
    A("  s_mov_b32 m0, s47")
    kunit("s49", mkwait(0, True))
    A("  s_add_u32 m0, s47, 0x1000")
    A("  s_xor_b32 s48, s49, 0x1000")
    kunit("s48", mkwait(4, True))
    A("  s_add_u32 m0, s47, 0x2000")
    A("  s_xor_b32 s48, s46, 0x1000")
    vunit("s46", mkwait(8, True))
    A("  s_add_u32 m0, s47, 0x3000")
    A("  s_mov_b32 s46, s49")
    vunit("s48", mkwait(12, True))
    A("  s_add_u32 s47, s47, 0x4000")
    A("  s_and_b32 s47, s47, 0xffff")
    A("  s_add_u32 s44, s44, 1")
    if dyn:
        A("  s_branch L_lloop")
        A("L_dyn:")
        assert chkit + 4 <= GS - 5
        A("  s_bitcmp1_b32 s44, 0")
        A("  s_cbranch_scc1 L_odd")
        for par, reg in (("e", 50), ("o", 51)):
            if par == "o": A("L_odd:")
            A("  s_cmp_lt_u32 s44, %d" % GS)
            A("  s_cbranch_scc1 L_draw%s" % par)
            A("  s_mov_b32 s57, 0x1000000")
            A("L_spin%s:" % par)
            A("  s_sub_u32 s57, s57, 1")
            A("  s_cbranch_scc1 L_fin")
            A("  s_bitcmp1_b32 s%d, 0" % reg)
            A("  s_cbranch_scc0 L_spin%s" % par)
            A("  s_cmp_gt_u32 s%d, %d" % (reg, 2 * POOL))
            A("  s_cbranch_scc1 L_fin")
            if lay == 0:
                A("  s_add_u32 s49, s%d, %d" % (reg, 8 * GS - 1))
                A("  s_lshl_b32 s49, s49, 12")
            else:
                A("  s_bfe_u32 s49, s%d, 0x20001" % reg)
                A("  s_lshl_b32 s49, s49, 5")
                A("  s_lshr_b32 s%d, s%d, 3" % (reg, reg))
                A("  s_add_u32 s49, s49, s%d" % reg)
                A("  s_add_u32 s49, s49, %d" % GS)
                A("  s_lshl_b32 s49, s49, 13")
            A("L_draw%s:" % par)
            if fake:
                A("  s_sub_u32 s%d, s44, %d" % (reg, GS - 2))
                A("  s_lshl_b32 s%d, s%d, 2" % (reg, reg))
                A("  s_add_u32 s%d, s%d, s23" % (reg, reg))
                A("  s_lshl1_add_u32 s%d, s%d, 1" % (reg, reg))
            else:
                A("  s_mov_b32 s%d, 2" % reg)
                A("  s_atomic_add s%d, s[40:41], 0x0 glc" % reg)
            A("  s_branch L_go")
        A("L_fin:")
        A("  v_mov_b32 v14, s44")
        A("  ds_write_b32 v10, v14")
        A("  s_waitcnt lgkmcnt(0)")
    else:
        A("  s_cmp_lt_u32 s44, 32")
        A("  s_cbranch_scc1 L_lloop")
    A("  s_add_u32 m0, s47, 0x2000")
    A("  s_xor_b32 s48, s46, 0x1000")
    vunit("s46", mkwait(0, False))
    A("  s_add_u32 m0, s47, 0x3000")
    vunit("s48", mkwait(4, False))
    if p >= 8:
        A("  s_waitcnt vmcnt(24)")
        A("  s_barrier")
    if stamps:
        A("  s_mov_b32 s74, s44")
        A("  s_mov_b32 s75, 0")
    ST(2)
    A("  s_waitcnt vmcnt(16)")
    A("  s_barrier")
    A("  s_waitcnt vmcnt(8)")
    A("  s_barrier")
    A("  s_waitcnt vmcnt(0)")
    ST(3)
    A("  s_barrier")
    A("  s_branch L_end")
    A("L_cons:")
    Q, S, PC, KF, VF, ACC, PN = 12, 28, 36, 40, 72, 80, 112
    A("  s_sub_u32 s3, s3, 1")
    A("  v_xor_b32 v1, v8, v9")
    A("  v_lshlrev_b32 v1, 4, v1")
    A("  v_lshl_add_u32 v1, v9, 8, v1")
    A("  v_xor_b32 v2, 64, v1")
    A("  v_xor_b32 v3, 0x80, v1")
    A("  v_xor_b32 v4, 0xc0, v1")
    A("  v_bfe_u32 v5, v0, 2, 4")
    A("  v_and_b32 v6, 7, v5")
    A("  v_lshlrev_b32 v6, 1, v6")
    A("  v_bfe_u32 v7, v0, 1, 1")
    A("  s_lshl_b32 s57, s3, 2")
    A("  v_add_u32 v7, s57, v7")
    A("  v_xor_b32 v6, v6, v7")
    A("  v_lshlrev_b32 v6, 4, v6")
    A("  v_lshl_add_u32 v5, v5, 8, v6")
    A("  v_and_b32 v6, 1, v0")
    A("  v_lshl_add_u32 v5, v6, 3, v5")
    A("  v_xor_b32 v6, 32, v5")
    A("  v_and_b32 v7, 7, v0")
    A("  v_lshlrev_b32 v7, 8, v7")
    A("  v_lshlrev_b32 v10, 4, v8")
    A("  v_lshlrev_b32 v11, 3, v8")
    A("  s_lshl_b32 s57, s3, 6")
    A("  v_add_u32 v11, s57, v11")
    A("  v_bfe_u32 v93, v0, 3, 1")
    A("  v_lshl_add_u32 v93, v93, 5, v11")
    A("  v_add_u32 v93, v93, v7")
    A("  v_add_u32 v10, %d, v10" % QL)
    A("  v_add_u32 v11, %d, v11" % QL)
    A("  v_add_u32 v7, v7, v10")
    A("  v_lshlrev_b32 v91, 4, v0")
    c = (128 ** -0.5) * math.log2(math.e)
    A("  s_mov_b32 s53, 0x%08x" % f2u(c))
    A("  v_mov_b32 v88, 0xff800000")
    A("  v_mov_b32 v89, 0")
    for i in range(4):
        A("  v_mov_b64 v[%d:%d], 0" % (ACC + 2 * i, ACC + 2 * i + 1))
    A("  v_mov_b32 v90, 0")
    A("  v_mov_b32 v92, 0")
    A("  v_mov_b32 v95, 1.0")
    A("  v_mov_b32 v106, %d" % (QL + 4096))
    A("  v_lshlrev_b32 v107, 8, v0")
    A("  s_waitcnt lgkmcnt(0)")
    A("  s_lshl_b32 s56, s22, 15")
    A("  s_add_u32 s48, s20, s56")
    A("  s_addc_u32 s49, s21, 0")
    A("  s_mov_b32 s50, 0x8000")
    A("  s_mov_b32 s51, 0x20000")
    A("  s_mov_b32 s36, s18")
    A("  s_mov_b32 s37, s19")
    A("  s_movk_i32 s38, 256")
    A("  s_mov_b32 s39, 0x20000")
    A("  s_lshl_b32 s56, s22, 11")
    A("  s_add_u32 s40, s16, s56")
    A("  s_addc_u32 s41, s17, 0")
    A("  s_movk_i32 s42, 2048")
    A("  s_mov_b32 s43, 0x20000")
    A("  s_lshr_b32 s58, s22, 2")
    A("  s_lshl_b32 s57, s58, 1")
    A("  s_and_b32 s57, s57, 0xfffffffc")
    A("  s_load_dword s54, s[14:15], s57")
    A("  s_lshl_b32 s57, s3, 13")
    A("  s_lshl_b32 s56, s23, 11")
    A("  s_add_u32 s60, s56, s57")
    A("  s_lshl_b32 s57, s23, 13")
    for k in range(1, 4):
        A("  s_add_u32 s56, s23, %d" % k)
        A("  s_and_b32 s56, s56, 3")
        A("  s_lshl_b32 s56, s56, 11")
        A("  s_add_u32 s%d, s56, s57" % (60 + k))
    A("  s_add_u32 s24, s20, 0x200000")
    A("  s_addc_u32 s25, s21, 0")
    A("  s_mov_b32 s26, 0x20000")
    A("  s_mov_b32 s27, 0x20000")
    A("  s_mov_b32 s28, 0x10000")
    A("  s_xor_b32 s56, s3, 3")
    A("  s_or_b32 s56, s56, s2")
    A("  s_cselect_b32 s44, -1, %d" % it1)
    A("  s_cselect_b32 s45, -1, %d" % it2)
    A("  s_cbranch_scc1 L_notag0")
    A("  buffer_load_dword v94, v92, s[24:27], 0 offen sc1")
    A("L_notag0:")
    A("  s_waitcnt lgkmcnt(0)")
    A("  s_barrier")
    ST(4)
    for j in range(4):
        A("  ds_read_b128 v[%d:%d], v7 offset:%d" % (Q + 4 * j, Q + 3 + 4 * j, 64 * j))
    def kreads(regs, off):
        for u in range(2):
            for j in range(4):
                r = KF + 16 * u + 4 * j
                A("  ds_read_b128 v[%d:%d], v%d offset:%d" % (r, r + 3, regs[j], off + 4096 * u))
    kreads([1, 2, 3, 4], 0)
    A("  s_cmp_lg_u32 s23, 0")
    A("  s_cbranch_scc1 L_notree")
    A("  s_waitcnt lgkmcnt(0)")
    for j in range(4):
        A("  ds_read_b128 v[%d:%d], v10 offset:%d" % (108 + 4 * j, 111 + 4 * j, 2048 + 64 * j))
    A("  ds_read_b64 v[96:97], v11 offset:%d" % (3072))
    A("  ds_read_b64 v[98:99], v11 offset:%d" % (3072 + 32))
    A("  s_and_b32 s58, s58, 1")
    A("  s_lshl_b32 s58, s58, 4")
    A("  s_lshr_b32 s54, s54, s58")
    A("  s_lshl_b32 s54, s54, 16")
    A("  v_sub_f32 v8, 1.0, s54")
    A("  s_mov_b32 s55, 0x%08x" % f2u(-1e9 * math.log2(math.e)))
    A("  v_mul_f32 v8, s55, v8")
    A("  v_mov_b32 v89, 0x3e800000")
    A("  s_waitcnt lgkmcnt(0)")
    for j in range(4):
        cc = "0" if j == 0 else "v[124:127]"
        A("  v_mfma_f32_16x16x32_bf16 v[124:127], v[%d:%d], v[%d:%d], %s" % (108 + 4 * j, 111 + 4 * j, Q + 4 * j, Q + 3 + 4 * j, cc))
    for a in range(2):
        A("  v_lshlrev_b32 v%d, 16, v%d" % (ACC + 4 * a, 96 + 2 * a))
        A("  v_and_b32 v%d, 0xffff0000, v%d" % (ACC + 4 * a + 1, 96 + 2 * a))
        A("  v_lshlrev_b32 v%d, 16, v%d" % (ACC + 4 * a + 2, 97 + 2 * a))
        A("  v_and_b32 v%d, 0xffff0000, v%d" % (ACC + 4 * a + 3, 97 + 2 * a))
    A("  s_nop 1")
    A("  v_fma_f32 v88, v124, s53, v8")
    A("L_notree:")
    A("  s_mov_b32 s47, 0")
    A("  s_mov_b32 s52, 0")
    A("  v_mov_b32 v108, -1")
    A("  s_mov_b32 s29, 0")
    A("  s_waitcnt lgkmcnt(0)")
    A("  s_branch L_qk")
    def trreads(off, a0=104):
        A("  ds_read_b64_tr_b16 v[%d:%d], v%d offset:%d" % (VF, VF + 1, a0, off))
        A("  ds_read_b64_tr_b16 v[%d:%d], v%d offset:%d" % (VF + 2, VF + 3, a0, off + 4096))
        A("  ds_read_b64_tr_b16 v[%d:%d], v%d offset:%d" % (VF + 4, VF + 5, a0 + 1, off))
        A("  ds_read_b64_tr_b16 v[%d:%d], v%d offset:%d" % (VF + 6, VF + 7, a0 + 1, off + 4096))
    def pv(Pr, n):
        A("  s_waitcnt lgkmcnt(%d)" % (n + 2))
        A("  v_mfma_f32_16x16x32_bf16 v[%d:%d], v[%d:%d], v[%d:%d], v[%d:%d]" % (ACC, ACC + 3, VF, VF + 3, Pr, Pr + 3, ACC, ACC + 3))
        A("  s_waitcnt lgkmcnt(%d)" % n)
        A("  v_mfma_f32_16x16x32_bf16 v[%d:%d], v[%d:%d], v[%d:%d], v[%d:%d]" % (ACC + 4, ACC + 7, VF + 4, VF + 7, Pr, Pr + 3, ACC + 4, ACC + 7))
    A("L_tail:")
    for i in range(8):
        A("  v_mul_f32 v%d, v%d, v95" % (ACC + i, ACC + i))
    A("  v_mov_b64 v[%d:%d], v[%d:%d]" % (PC, PC + 1, PN, PN + 1))
    A("  v_mov_b64 v[%d:%d], v[%d:%d]" % (PC + 2, PC + 3, PN + 2, PN + 3))
    A("  v_mov_b64 v[116:117], v[104:105]")
    A("  s_mov_b32 s29, 1")
    A("  s_barrier")
    kreads([100, 101, 102, 103], 0)
    A("  s_branch L_qk")
    A("L_cloop:")
    A("  s_barrier")
    if dyn:
        A("  ds_read_b32 v108, v106")
    trreads(0x2000)
    kreads([100, 101, 102, 103], 0)
    for i in range(8):
        A("  v_mul_f32 v%d, v%d, v95" % (ACC + i, ACC + i))
    pv(PN, 8)
    A("L_qk:")
    for u in range(2):
        for j in range(4):
            d = S + 4 * u
            a = KF + 16 * u + 4 * j
            cc = "0" if j == 0 else "v[%d:%d]" % (d, d + 3)
            A("  s_waitcnt lgkmcnt(%d)" % (7 - 4 * u - j))
            A("  v_mfma_f32_16x16x32_bf16 v[%d:%d], v[%d:%d], v[%d:%d], %s" % (d, d + 3, a, a + 3, Q + 4 * j, Q + 3 + 4 * j, cc))
    A("  s_add_u32 s52, s52, 0x4000")
    A("  s_and_b32 s52, s52, 0xffff")
    for k in range(6):
        A("  v_add_u32 v%d, s52, v%d" % (100 + k, 1 + k))
    A("  v_mov_b32 v95, 1.0")
    A("  v_max3_f32 v8, v%d, v%d, v%d" % (S, S + 1, S + 2))
    A("  v_max3_f32 v8, v8, v%d, v%d" % (S + 3, S + 4))
    A("  v_max3_f32 v8, v8, v%d, v%d" % (S + 5, S + 6))
    A("  v_max_f32 v8, v8, v%d" % (S + 7))
    A("  v_mul_f32 v8, s53, v8")
    A("  v_cmp_gt_f32 vcc, v8, v88")
    A("  s_cbranch_vccz L_skip")
    A("  v_mov_b32 v9, v8")
    A("  s_nop 1")
    A("  v_permlane32_swap_b32 v8, v9")
    A("  v_max_f32 v8, v8, v9")
    A("  v_mov_b32 v9, v8")
    A("  s_nop 1")
    A("  v_permlane16_swap_b32 v8, v9")
    A("  v_max3_f32 v8, v8, v9, v88")
    A("  v_sub_f32 v95, v88, v8")
    A("  v_exp_f32 v95, v95")
    A("  v_mov_b32 v88, v8")
    A("  v_mul_f32 v89, v89, v95")
    A("L_skip:")
    for i in range(8):
        A("  v_fma_f32 v%d, v%d, s53, -v88" % (S + i, S + i))
    for i in range(8):
        A("  v_exp_f32 v%d, v%d" % (S + i, S + i))
    for m in range(4):
        A("  v_cvt_pk_bf16_f32 v%d, v%d, v%d" % (PN + m, S + 2 * m, S + 1 + 2 * m))
    for i in range(8):
        A("  v_add_f32 v89, v89, v%d" % (S + i))
    A("  s_cmp_lg_u32 s29, 0")
    A("  s_cbranch_scc1 L_final")
    A("  s_add_u32 s47, s47, 1")
    if dyn:
        A("  v_readfirstlane_b32 s46, v108")
    A("  s_cmp_eq_u32 s47, s44")
    A("  s_cbranch_scc0 L_not1")
    A("  s_waitcnt vmcnt(0)")
    A("  v_add_u32 v94, 1, v94")
    A("  v_max_u32 v94, 1, v94")
    if dyn:
        A("  v_mov_b32 v9, 1")
        A("  buffer_store_dword v9, v107, s[24:27], s28 offen sc1")
    A("  s_mov_b64 exec, 1")
    A("  buffer_store_dword v94, v92, s[24:27], 0 offen sc1")
    A("  s_mov_b64 exec, -1")
    A("L_not1:")
    A("  s_cmp_eq_u32 s47, s45")
    A("  s_cbranch_scc0 L_not2")
    A("  s_waitcnt vmcnt(0)")
    A("  s_mov_b64 exec, 1")
    A("  buffer_store_dword v94, v92, s[36:39], 0 offen sc1")
    A("  s_mov_b64 exec, -1")
    A("L_not2:")
    A("  s_cmp_eq_u32 s47, %d" % chkit)
    A("  s_cbranch_scc0 L_nochk")
    A("  buffer_load_dword v90, v92, s[36:39], 0 offen sc1")
    A("L_nochk:")
    A("  s_cmp_eq_u32 s47, %d" % (chkit + 4))
    A("  s_cbranch_scc0 L_tagok")
    A("  s_mov_b32 s57, 0x200000")
    A("L_tagspin:")
    A("  s_waitcnt vmcnt(0)")
    A("  v_readfirstlane_b32 s56, v90")
    A("  s_cmp_lg_u32 s56, 0")
    A("  s_cbranch_scc1 L_tagok")
    A("  buffer_load_dword v90, v92, s[36:39], 0 offen sc1")
    A("  s_sub_u32 s57, s57, 1")
    A("  s_cbranch_scc0 L_tagspin")
    A("L_tagok:")
    if dyn:
        A("  s_sub_u32 s46, s46, 1")
        A("  s_cmp_lg_u32 s47, s46")
    else:
        A("  s_cmp_lg_u32 s47, 31")
    A("  s_cbranch_scc1 L_cloop")
    A("  s_branch L_tail")
    A("L_final:")
    A("  v_mov_b32 v9, v89")
    A("  v_mov_b32 v109, v88")
    A("  s_nop 0")
    A("  v_permlane32_swap_b32 v89, v9")
    A("  v_add_f32 v89, v89, v9")
    A("  v_mov_b32 v9, v89")
    A("  s_nop 1")
    A("  v_permlane16_swap_b32 v89, v9")
    A("  v_add_f32 v110, v89, v9")
    A("  s_barrier")
    trreads(0x2000, 116)
    pv(PC, 0)
    A("  s_nop 3")
    A("  v_mov_b32 v99, v90")
    A("  v_mov_b32 v111, v90")
    A("  s_mov_b32 vcc_lo, 0xff00ff00")
    A("  s_mov_b32 vcc_hi, 0xff00ff00")
    A("  s_cmp_lg_u32 s3, s23")
    for i in range(8):
        A("  v_mul_f32 v%d, v%d, v95" % (ACC + i, ACC + i))
    def polls():
        for k in range(3):
            A("  buffer_load_dwordx4 v[%d:%d], v91, s[48:51], s%d offen sc1" % (12 + 8 * k, 15 + 8 * k, 61 + k))
            A("  buffer_load_dwordx4 v[%d:%d], v91, s[48:51], s%d offen offset:1024 sc1" % (16 + 8 * k, 19 + 8 * k, 61 + k))
    if spec:
        A("  s_cbranch_scc1 L_bar")
        polls()
    A("L_bar:")
    ST(6)
    A("  s_barrier")
    trreads(0x2000)
    pv(PN, 0)
    A("  s_nop 7")
    for r, d in enumerate([96, 97, 98, 108]):
        A("  v_cndmask_b32 v%d, v%d, v%d, vcc" % (d, ACC + r, ACC + 4 + r))
    A("  s_cbranch_scc0 L_consume")
    A("  buffer_store_dwordx4 v[96:99], v91, s[48:51], s60 offen sc1")
    A("  buffer_store_dwordx4 v[108:111], v91, s[48:51], s60 offen offset:1024 sc1")
    ST(9)
    A("  s_branch L_end")
    A("L_consume:")
    ST(9)
    A("  s_mov_b32 s57, 0x200000")
    if not spec:
        polls()
    A("L_poll:")
    A("  s_waitcnt vmcnt(0)")
    A("  v_xor_b32 v8, v15, v90")
    A("  v_xor_b32 v9, v19, v90")
    A("  v_xor_b32 v10, v23, v90")
    A("  v_or3_b32 v8, v8, v9, v10")
    A("  v_xor_b32 v9, v27, v90")
    A("  v_xor_b32 v10, v31, v90")
    A("  v_or3_b32 v8, v8, v9, v10")
    A("  v_xor_b32 v9, v35, v90")
    A("  v_or_b32 v8, v8, v9")
    A("  v_cmp_ne_u32 vcc, 0, v8")
    A("  s_cbranch_vccz L_pollok")
    if sleep:
        A("  s_sleep %d" % sleep)
    polls()
    A("  s_sub_u32 s57, s57, 1")
    A("  s_cbranch_scc0 L_poll")
    A("  s_waitcnt vmcnt(0)")
    A("L_pollok:")
    ST(10)
    A("  v_max3_f32 v8, v109, v17, v25")
    A("  v_max_f32 v8, v8, v33")
    A("  v_sub_f32 v109, v109, v8")
    for k in range(3):
        A("  v_sub_f32 v%d, v%d, v8" % (17 + 8 * k, 17 + 8 * k))
    A("  v_exp_f32 v109, v109")
    for k in range(3):
        A("  v_exp_f32 v%d, v%d" % (17 + 8 * k, 17 + 8 * k))
    A("  v_mul_f32 v110, v109, v110")
    for k in range(3):
        A("  v_fmac_f32 v110, v%d, v%d" % (17 + 8 * k, 18 + 8 * k))
    A("  v_rcp_f32 v110, v110")
    own = [96, 97, 98, 108]
    for r in range(4):
        A("  v_mul_f32 v%d, v109, v%d" % (own[r], own[r]))
    for k in range(3):
        for r in range(4):
            A("  v_fmac_f32 v%d, v%d, v%d" % (own[r], 17 + 8 * k, 12 + 8 * k + (r if r < 3 else 4)))
    for r in range(4):
        A("  v_mul_f32 v%d, v110, v%d" % (own[r], own[r]))
    A("  v_cvt_pk_bf16_f32 v96, v96, v97")
    A("  v_cvt_pk_bf16_f32 v97, v98, v108")
    A("  buffer_store_dwordx2 v[96:97], v93, s[40:43], 0 offen%s" % ["", " sc1", " nt", " sc0 sc1"][outsc])
    A("L_end:")
    if stamps:
        A("  s_waitcnt vmcnt(0)")
        ST(11)
        A("  s_add_u32 s24, s20, 0x8000000")
        A("  s_addc_u32 s25, s21, 0")
        A("  s_mov_b32 s26, 0x100000")
        A("  s_mov_b32 s27, 0x20000")
        A("  s_getreg_b32 s58, hwreg(HW_REG_HW_ID)")
        A("  s_mul_i32 s56, s2, %d" % W)
        A("  v_readfirstlane_b32 s57, v128")
        A("  s_add_u32 s56, s56, s57")
        A("  s_lshl_b32 s56, s56, 7")
        A("  s_mov_b64 exec, 1")
        A("  v_mov_b32 v1, 0")
        for i in range(12):
            A("  v_mov_b32 v2, s%d" % (64 + 2 * i))
            A("  v_mov_b32 v3, s%d" % (65 + 2 * i))
            A("  buffer_store_dwordx2 v[2:3], v1, s[24:27], s56 offen offset:%d" % (8 * i))
            A("  s_nop 1")
        A("  s_getreg_b32 s57, hwreg(HW_REG_XCC_ID)")
        A("  v_mov_b32 v2, s57")
        A("  v_mov_b32 v3, s58")
        A("  buffer_store_dwordx2 v[2:3], v1, s[24:27], s56 offen offset:120")
    A("L_exit:")
    A("  s_endpgm")
    footer(L, 136 if stamps else 128, 96 if stamps else 64)
    s = "\n".join(L) + "\n"
    if stamps:
        s = s.replace("  v_and_b32 v0, 63, v0\n", "  v_and_b32 v0, 63, v0\n  v_mov_b32 v128, v1\n", 1)
    return s

if __name__ == "__main__":
    for a in sys.argv[1:]:
        name, _, kv = a.partition(":")
        kw = {}
        for x in kv.split(","):
            if not x: continue
            k, v = x.split("=")
            kw[k] = int(v)
        open(name, "w").write(gen(**kw))
```

```python
import sys, math, struct
from gen2 import header, footer, f2u, NAME

def gen(nt=1, mapmode=2, stamps=0, N=18, sleep=1, it1=3, it2=6, chkit=14, spec=1, lprio=3, GS=28, outsc=0, lay=1, fake=0, kx=0, dual=0, around=48, nocomp=0, noq=0, nopoll=0, da=-1, db=-1, dk=10, skew=0):
    L = []; A = L.append
    NT = " nt" if nt else ""
    W = 5
    POOL = 128 - 4 * GS
    dyn = POOL > 0
    def ST(i):
        if stamps:
            A("  s_memrealtime s[%d:%d]" % (64 + 2 * i, 65 + 2 * i))
            A("  s_waitcnt lgkmcnt(0)")
    QL = 65536
    header(L, "; @launch grid=(256,1,1) block=(320,1,1) lds=%d" % (QL + 8192 + 64))
    A("  s_cmp_ge_u32 s2, 256")
    A("  s_cbranch_scc1 L_exit")
    if stamps:
        for i in range(1, 12):
            A("  s_mov_b64 s[%d:%d], 0" % (64 + 2 * i, 65 + 2 * i))
        A("  s_memrealtime s[64:65]")
    A("  s_load_dwordx16 s[4:19], s[0:1], 0")
    A("  s_load_dwordx2 s[20:21], s[0:1], 64")
    A("  v_lshrrev_b32 v1, 6, v0")
    A("  v_and_b32 v0, 63, v0")
    A("  v_readfirstlane_b32 s3, v1")
    if mapmode == 0:
        A("  s_lshr_b32 s22, s2, 2")
        A("  s_and_b32 s23, s2, 3")
    elif mapmode == 1:
        A("  s_and_b32 s22, s2, 63")
        A("  s_lshr_b32 s23, s2, 6")
    elif mapmode == 3:
        A("  s_and_b32 s22, s2, 7")
        A("  s_lshr_b32 s23, s2, 5")
        A("  s_lshl3_add_u32 s22, s22, s23")
        A("  s_bfe_u32 s23, s2, 0x20003")
    else:
        A("  s_lshr_b32 s22, s2, 3")
        A("  s_and_b32 s23, s2, 1")
        A("  s_lshl1_add_u32 s22, s22, s23")
        A("  s_bfe_u32 s23, s2, 0x20001")
    A("  v_lshrrev_b32 v8, 4, v0")
    A("  v_and_b32 v9, 15, v0")
    A("  s_cmp_lg_u32 s3, 0")
    A("  s_cbranch_scc1 L_cons")
    if lprio:
        A("  s_setprio %d" % lprio)
    A("  v_xor_b32 v1, v9, v8")
    A("  v_lshlrev_b32 v1, 4, v1")
    A("  v_lshl_add_u32 v1, v8, 8, v1")
    A("  v_xor_b32 v2, 64, v1")
    A("  v_xor_b32 v3, 0x80, v1")
    A("  v_xor_b32 v4, 0xc0, v1")
    A("  s_lshl_b32 s56, s22, 20")
    A("  s_mul_i32 s46, s23, %d" % ((GS if lay == 0 else 32) * 8192))
    if kx:
        if kx == 1:
            A("  s_lshr_b32 s52, s2, 5")
        else:
            A("  s_bfe_u32 s52, s2, 0x30003")
        A("  s_lshl_b32 s52, s52, 12")
        A("  s_mov_b32 s45, s46")
        A("  s_xor_b32 s46, s46, s52")
    A("  s_mov_b32 s26, 0x100000")
    A("  s_mov_b32 s27, 0x20000")
    A("  s_xor_b32 s48, s46, 0x1000")
    A("  s_mov_b32 m0, 0")
    A("  v_lshlrev_b32 v5, 1, v8")
    A("  v_xor_b32 v5, v9, v5")
    A("  v_lshlrev_b32 v5, 4, v5")
    A("  v_lshl_add_u32 v5, v8, 8, v5")
    A("  v_xor_b32 v6, 0x80, v5")
    A("  s_mov_b32 s30, 0x100000")
    A("  s_mov_b32 s31, 0x20000")
    A("  s_waitcnt lgkmcnt(0)")
    ST(1)
    A("  s_add_u32 s24, s6, s56")
    A("  s_addc_u32 s25, s7, 0")
    def kunit(soff, wait):
        for i in range(4):
            wait(i)
            A("  buffer_load_dwordx4 v%d, s[24:27], %s offen offset:%d%s lds" % (1 + i, soff, 1024 * i, NT))
    def vunit(soff, wait):
        for i in range(4):
            wait(i)
            A("  buffer_load_dwordx4 v%d, s[28:31], %s offen offset:%d%s lds" % (5 + (i & 1), soff, 1024 * i, NT))
    now = lambda i: None
    kunit("s46", now)
    A("  s_mov_b32 m0, 0x1000")
    A("  s_add_u32 s28, s8, s56")
    A("  s_addc_u32 s29, s9, 0")
    kunit("s48", now)
    lag = 1 + (N - 1) // 16
    p = (N - 1) % 16
    assert lag == 2 and N <= 32
    A("  s_mov_b32 s44, 1")
    A("  s_movk_i32 s47, 0x4000")
    if dyn:
        A("  v_mov_b32 v10, %d" % (QL + 8192))
        A("  v_mov_b32 v11, -1")
        A("  ds_write_b32 v10, v11")
        A("  s_lshl_b32 s57, s22, 8")
        A("  s_add_u32 s57, s57, 0x210000")
        A("  s_add_u32 s40, s20, s57")
        A("  s_addc_u32 s41, s21, 0")
        A("  s_waitcnt lgkmcnt(0)")
    A("L_lloop:")
    if kx:
        assert not dyn
        A("  s_add_u32 s45, s45, 0x2000")
        A("  s_xor_b32 s49, s45, s52")
    else:
        A("  s_add_u32 s49, s46, 0x2000")
    if dyn:
        A("  s_cmp_lt_u32 s44, %d" % (GS - 2))
        A("  s_cbranch_scc0 L_dyn")
        A("L_go:")
    def mkwait(base, cond):
        def w(i):
            A("  s_waitcnt vmcnt(%d)" % (N - 1))
            if base + i == p:
                if cond:
                    A("  s_cmp_eq_u32 s44, 1")
                    A("  s_cbranch_scc1 L_nobar")
                    A("  s_barrier")
                    A("L_nobar:")
                else:
                    A("  s_barrier")
        return w
    A("  s_mov_b32 m0, s47")
    kunit("s49", mkwait(0, True))
    A("  s_add_u32 m0, s47, 0x1000")
    A("  s_xor_b32 s48, s49, 0x1000")
    kunit("s48", mkwait(4, True))
    A("  s_add_u32 m0, s47, 0x2000")
    A("  s_xor_b32 s48, s46, 0x1000")
    vunit("s46", mkwait(8, True))
    A("  s_add_u32 m0, s47, 0x3000")
    A("  s_mov_b32 s46, s49")
    vunit("s48", mkwait(12, True))
    A("  s_add_u32 s47, s47, 0x4000")
    A("  s_and_b32 s47, s47, 0xffff")
    A("  s_add_u32 s44, s44, 1")
    if dyn:
        A("  s_branch L_lloop")
        A("L_dyn:")
        assert chkit + 4 <= GS - 5
        A("  s_bitcmp1_b32 s44, 0")
        A("  s_cbranch_scc1 L_odd")
        for par, reg in (("e", 50), ("o", 51)):
            if par == "o": A("L_odd:")
            A("  s_cmp_lt_u32 s44, %d" % GS)
            A("  s_cbranch_scc1 L_draw%s" % par)
            A("  s_mov_b32 s57, 0x1000000")
            A("L_spin%s:" % par)
            A("  s_sub_u32 s57, s57, 1")
            A("  s_cbranch_scc1 L_fin")
            A("  s_bitcmp1_b32 s%d, 0" % reg)
            A("  s_cbranch_scc0 L_spin%s" % par)
            A("  s_cmp_gt_u32 s%d, %d" % (reg, 2 * POOL))
            A("  s_cbranch_scc1 L_fin")
            if lay == 0:
                A("  s_add_u32 s49, s%d, %d" % (reg, 8 * GS - 1))
                A("  s_lshl_b32 s49, s49, 12")
            else:
                A("  s_bfe_u32 s49, s%d, 0x20001" % reg)
                A("  s_lshl_b32 s49, s49, 5")
                A("  s_lshr_b32 s%d, s%d, 3" % (reg, reg))
                A("  s_add_u32 s49, s49, s%d" % reg)
                A("  s_add_u32 s49, s49, %d" % GS)
                A("  s_lshl_b32 s49, s49, 13")
            A("L_draw%s:" % par)
            if fake:
                A("  s_sub_u32 s%d, s44, %d" % (reg, GS - 2))
                A("  s_lshl_b32 s%d, s%d, 2" % (reg, reg))
                A("  s_add_u32 s%d, s%d, s23" % (reg, reg))
                A("  s_lshl1_add_u32 s%d, s%d, 1" % (reg, reg))
            else:
                A("  s_mov_b32 s%d, 2" % reg)
                A("  s_atomic_add s%d, s[40:41], 0x0 glc" % reg)
            A("  s_branch L_go")
        A("L_fin:")
        A("  v_mov_b32 v14, s44")
        A("  ds_write_b32 v10, v14")
        A("  s_waitcnt lgkmcnt(0)")
    else:
        A("  s_cmp_lt_u32 s44, 32")
        A("  s_cbranch_scc1 L_lloop")
    A("  s_add_u32 m0, s47, 0x2000")
    A("  s_xor_b32 s48, s46, 0x1000")
    vunit("s46", mkwait(0, False))
    A("  s_add_u32 m0, s47, 0x3000")
    vunit("s48", mkwait(4, False))
    if p >= 8:
        A("  s_waitcnt vmcnt(24)")
        A("  s_barrier")
    if stamps:
        A("  s_mov_b32 s74, s44")
        A("  s_mov_b32 s75, 0")
    ST(2)
    A("  s_waitcnt vmcnt(16)")
    A("  s_barrier")
    A("  s_waitcnt vmcnt(8)")
    A("  s_barrier")
    A("  s_waitcnt vmcnt(0)")
    ST(3)
    A("  s_barrier")
    A("  s_branch L_end")
    A("L_cons:")
    Q, S, PC, KF, VF, ACC, PN = 12, 28, 36, 40, 72, 80, 112
    A("  s_sub_u32 s3, s3, 1")
    A("  v_xor_b32 v1, v8, v9")
    A("  v_lshlrev_b32 v1, 4, v1")
    A("  v_lshl_add_u32 v1, v9, 8, v1")
    A("  v_xor_b32 v2, 64, v1")
    A("  v_xor_b32 v3, 0x80, v1")
    A("  v_xor_b32 v4, 0xc0, v1")
    A("  v_bfe_u32 v5, v0, 2, 4")
    A("  v_and_b32 v6, 7, v5")
    A("  v_lshlrev_b32 v6, 1, v6")
    A("  v_bfe_u32 v7, v0, 1, 1")
    A("  s_lshl_b32 s57, s3, 2")
    A("  v_add_u32 v7, s57, v7")
    A("  v_xor_b32 v6, v6, v7")
    A("  v_lshlrev_b32 v6, 4, v6")
    A("  v_lshl_add_u32 v5, v5, 8, v6")
    A("  v_and_b32 v6, 1, v0")
    A("  v_lshl_add_u32 v5, v6, 3, v5")
    A("  v_xor_b32 v6, 32, v5")
    A("  v_and_b32 v7, 7, v0")
    A("  v_lshlrev_b32 v7, 8, v7")
    A("  v_lshlrev_b32 v10, 4, v8")
    A("  v_lshlrev_b32 v11, 3, v8")
    A("  s_lshl_b32 s57, s3, 6")
    A("  v_add_u32 v11, s57, v11")
    A("  v_bfe_u32 v93, v0, 3, 1")
    A("  v_lshl_add_u32 v93, v93, 5, v11")
    A("  v_add_u32 v93, v93, v7")
    A("  s_lshl_b32 s59, s3, 11")
    A("  s_add_u32 s59, s59, %d" % QL)
    A("  v_add3_u32 v7, v7, v10, s59")
    A("  v_lshlrev_b32 v91, 4, v0")
    c = (128 ** -0.5) * math.log2(math.e)
    A("  s_mov_b32 s53, 0x%08x" % f2u(c))
    A("  v_mov_b32 v88, 0xff800000")
    A("  v_mov_b32 v89, 0")
    for i in range(4):
        A("  v_mov_b64 v[%d:%d], 0" % (ACC + 2 * i, ACC + 2 * i + 1))
    A("  v_mov_b32 v90, 0")
    A("  v_mov_b32 v92, 0")
    A("  v_mov_b32 v95, 1.0")
    A("  v_mov_b32 v106, %d" % (QL + 8192))
    A("  v_lshlrev_b32 v107, 8, v0")
    A("  s_lshl_b32 s57, s22, 11")
    A("  s_movk_i32 s34, 2048")
    A("  s_mov_b32 s35, 0x20000")
    A("  s_mov_b32 m0, s59")
    A("  s_waitcnt lgkmcnt(0)")
    A("  s_add_u32 s32, s4, s57")
    A("  s_addc_u32 s33, s5, 0")
    A("  buffer_load_dwordx4 v91, s[32:35], 0 offen lds")
    A("  buffer_load_dwordx4 v91, s[32:35], 0 offen offset:1024 lds")
    A("  s_cmp_lg_u32 s23, 0")
    A("  s_cbranch_scc1 L_notreeld")
    A("  s_lshl_b32 s57, s22, 8")
    A("  s_add_u32 s36, s10, s57")
    A("  s_addc_u32 s37, s11, 0")
    A("  s_movk_i32 s38, 256")
    A("  s_mov_b32 s39, 0x20000")
    A("  s_add_u32 s40, s12, s57")
    A("  s_addc_u32 s41, s13, 0")
    A("  s_movk_i32 s42, 256")
    A("  s_mov_b32 s43, 0x20000")
    for j in range(4):
        A("  buffer_load_dwordx4 v[%d:%d], v10, s[36:39], 0 offen offset:%d" % (108 + 4 * j, 111 + 4 * j, 64 * j))
    A("  buffer_load_dwordx2 v[96:97], v11, s[40:43], 0 offen")
    A("  buffer_load_dwordx2 v[98:99], v11, s[40:43], 0 offen offset:32")
    A("  s_lshr_b32 s58, s22, 2")
    A("  s_lshl_b32 s57, s58, 1")
    A("  s_and_b32 s57, s57, 0xfffffffc")
    A("  s_load_dword s54, s[14:15], s57")
    A("L_notreeld:")
    A("  s_lshl_b32 s56, s22, 15")
    A("  s_add_u32 s48, s20, s56")
    A("  s_addc_u32 s49, s21, 0")
    A("  s_mov_b32 s50, 0x%x" % (0x408000 if dual else 0x8000))
    A("  s_mov_b32 s51, 0x20000")
    A("  s_mov_b32 s36, s18")
    A("  s_mov_b32 s37, s19")
    A("  s_movk_i32 s38, 256")
    A("  s_mov_b32 s39, 0x20000")
    A("  s_lshl_b32 s56, s22, 11")
    A("  s_add_u32 s40, s16, s56")
    A("  s_addc_u32 s41, s17, 0")
    A("  s_movk_i32 s42, 2048")
    A("  s_mov_b32 s43, 0x20000")
    A("  s_lshl_b32 s57, s3, 13")
    A("  s_lshl_b32 s56, s23, 11")
    A("  s_add_u32 s60, s56, s57")
    A("  s_lshl_b32 s57, s23, 13")
    for k in range(1, 4):
        A("  s_add_u32 s56, s23, %d" % k)
        A("  s_and_b32 s56, s56, 3")
        A("  s_lshl_b32 s56, s56, 11")
        A("  s_add_u32 s%d, s56, s57" % (60 + k))
    A("  s_add_u32 s24, s20, 0x200000")
    A("  s_addc_u32 s25, s21, 0")
    A("  s_mov_b32 s26, 0x20000")
    A("  s_mov_b32 s27, 0x20000")
    A("  s_mov_b32 s28, 0x10000")
    A("  s_xor_b32 s56, s3, 3")
    A("  s_or_b32 s56, s56, s2")
    A("  s_cselect_b32 s44, -1, %d" % it1)
    A("  s_cselect_b32 s45, -1, %d" % it2)
    A("  s_cbranch_scc1 L_notag0")
    A("  buffer_load_dword v94, v92, s[24:27], 0 offen sc1")
    A("L_notag0:")
    A("  s_barrier")
    ST(4)
    def kreads(regs, off):
        for u in range(2):
            for j in range(4):
                r = KF + 16 * u + 4 * j
                A("  ds_read_b128 v[%d:%d], v%d offset:%d" % (r, r + 3, regs[j], off + 4096 * u))
    kreads([1, 2, 3, 4], 0)
    A("  s_waitcnt vmcnt(0)")
    for j in range(4):
        A("  ds_read_b128 v[%d:%d], v7 offset:%d" % (Q + 4 * j, Q + 3 + 4 * j, 64 * j))
    A("  s_cmp_lg_u32 s23, 0")
    A("  s_cbranch_scc1 L_notree")
    A("  s_waitcnt lgkmcnt(0)")
    A("  s_and_b32 s58, s58, 1")
    A("  s_lshl_b32 s58, s58, 4")
    A("  s_lshr_b32 s54, s54, s58")
    A("  s_lshl_b32 s54, s54, 16")
    A("  v_sub_f32 v8, 1.0, s54")
    A("  s_mov_b32 s55, 0x%08x" % f2u(-1e9 * math.log2(math.e)))
    A("  v_mul_f32 v8, s55, v8")
    A("  v_mov_b32 v89, 0x3e800000")
    for j in range(4):
        cc = "0" if j == 0 else "v[124:127]"
        A("  v_mfma_f32_16x16x32_bf16 v[124:127], v[%d:%d], v[%d:%d], %s" % (108 + 4 * j, 111 + 4 * j, Q + 4 * j, Q + 3 + 4 * j, cc))
    for a in range(2):
        A("  v_lshlrev_b32 v%d, 16, v%d" % (ACC + 4 * a, 96 + 2 * a))
        A("  v_and_b32 v%d, 0xffff0000, v%d" % (ACC + 4 * a + 1, 96 + 2 * a))
        A("  v_lshlrev_b32 v%d, 16, v%d" % (ACC + 4 * a + 2, 97 + 2 * a))
        A("  v_and_b32 v%d, 0xffff0000, v%d" % (ACC + 4 * a + 3, 97 + 2 * a))
    A("  s_nop 1")
    A("  v_fma_f32 v88, v124, s53, v8")
    A("L_notree:")
    A("  s_mov_b32 s47, 0")
    A("  s_mov_b32 s52, 0")
    A("  v_mov_b32 v108, -1")
    A("  s_mov_b32 s29, 0")
    A("  s_waitcnt lgkmcnt(0)")
    A("  s_branch L_qk")
    def trreads(off, a0=104):
        A("  ds_read_b64_tr_b16 v[%d:%d], v%d offset:%d" % (VF, VF + 1, a0, off))
        A("  ds_read_b64_tr_b16 v[%d:%d], v%d offset:%d" % (VF + 2, VF + 3, a0, off + 4096))
        A("  ds_read_b64_tr_b16 v[%d:%d], v%d offset:%d" % (VF + 4, VF + 5, a0 + 1, off))
        A("  ds_read_b64_tr_b16 v[%d:%d], v%d offset:%d" % (VF + 6, VF + 7, a0 + 1, off + 4096))
    def pv(Pr, n):
        A("  s_waitcnt lgkmcnt(%d)" % (n + 2))
        A("  v_mfma_f32_16x16x32_bf16 v[%d:%d], v[%d:%d], v[%d:%d], v[%d:%d]" % (ACC, ACC + 3, VF, VF + 3, Pr, Pr + 3, ACC, ACC + 3))
        A("  s_waitcnt lgkmcnt(%d)" % n)
        A("  v_mfma_f32_16x16x32_bf16 v[%d:%d], v[%d:%d], v[%d:%d], v[%d:%d]" % (ACC + 4, ACC + 7, VF + 4, VF + 7, Pr, Pr + 3, ACC + 4, ACC + 7))
    A("L_tail:")
    for i in range(8):
        A("  v_mul_f32 v%d, v%d, v95" % (ACC + i, ACC + i))
    A("  v_mov_b64 v[%d:%d], v[%d:%d]" % (PC, PC + 1, PN, PN + 1))
    A("  v_mov_b64 v[%d:%d], v[%d:%d]" % (PC + 2, PC + 3, PN + 2, PN + 3))
    A("  v_mov_b64 v[116:117], v[104:105]")
    A("  s_mov_b32 s29, 1")
    A("  s_barrier")
    kreads([100, 101, 102, 103], 0)
    A("  s_branch L_qk")
    A("L_cloop:")
    A("  s_barrier")
    if dyn:
        A("  ds_read_b32 v108, v106")
    trreads(0x2000)
    kreads([100, 101, 102, 103], 0)
    for i in range(8):
        A("  v_mul_f32 v%d, v%d, v95" % (ACC + i, ACC + i))
    pv(PN, 8)
    A("L_qk:")
    for u in range(2):
        for j in range(4):
            d = S + 4 * u
            a = KF + 16 * u + 4 * j
            cc = "0" if j == 0 else "v[%d:%d]" % (d, d + 3)
            A("  s_waitcnt lgkmcnt(%d)" % (7 - 4 * u - j))
            A("  v_mfma_f32_16x16x32_bf16 v[%d:%d], v[%d:%d], v[%d:%d], %s" % (d, d + 3, a, a + 3, Q + 4 * j, Q + 3 + 4 * j, cc))
    A("  s_add_u32 s52, s52, 0x4000")
    A("  s_and_b32 s52, s52, 0xffff")
    for k in range(6):
        A("  v_add_u32 v%d, s52, v%d" % (100 + k, 1 + k))
    A("  v_mov_b32 v95, 1.0")
    A("  v_max3_f32 v8, v%d, v%d, v%d" % (S, S + 1, S + 2))
    A("  v_max3_f32 v8, v8, v%d, v%d" % (S + 3, S + 4))
    A("  v_max3_f32 v8, v8, v%d, v%d" % (S + 5, S + 6))
    A("  v_max_f32 v8, v8, v%d" % (S + 7))
    A("  v_mul_f32 v8, s53, v8")
    A("  v_cmp_gt_f32 vcc, v8, v88")
    A("  s_cbranch_vccz L_skip")
    A("  v_mov_b32 v9, v8")
    A("  s_nop 1")
    A("  v_permlane32_swap_b32 v8, v9")
    A("  v_max_f32 v8, v8, v9")
    A("  v_mov_b32 v9, v8")
    A("  s_nop 1")
    A("  v_permlane16_swap_b32 v8, v9")
    A("  v_max3_f32 v8, v8, v9, v88")
    A("  v_sub_f32 v95, v88, v8")
    A("  v_exp_f32 v95, v95")
    A("  v_mov_b32 v88, v8")
    A("  v_mul_f32 v89, v89, v95")
    A("L_skip:")
    for i in range(8):
        A("  v_fma_f32 v%d, v%d, s53, -v88" % (S + i, S + i))
    for i in range(8):
        A("  v_exp_f32 v%d, v%d" % (S + i, S + i))
    for m in range(4):
        A("  v_cvt_pk_bf16_f32 v%d, v%d, v%d" % (PN + m, S + 2 * m, S + 1 + 2 * m))
    for i in range(8):
        A("  v_add_f32 v89, v89, v%d" % (S + i))
    A("  s_cmp_lg_u32 s29, 0")
    A("  s_cbranch_scc1 L_final")
    A("  s_add_u32 s47, s47, 1")
    if dyn:
        A("  v_readfirstlane_b32 s46, v108")
    A("  s_cmp_eq_u32 s47, s44")
    A("  s_cbranch_scc0 L_not1")
    A("  s_waitcnt vmcnt(0)")
    A("  v_add_u32 v94, 1, v94")
    A("  v_max_u32 v94, 1, v94")
    if dyn:
        A("  v_mov_b32 v9, 1")
        A("  buffer_store_dword v9, v107, s[24:27], s28 offen sc1")
    A("  s_mov_b64 exec, 1")
    A("  buffer_store_dword v94, v92, s[24:27], 0 offen sc1")
    A("  s_mov_b64 exec, -1")
    A("L_not1:")
    A("  s_cmp_eq_u32 s47, s45")
    A("  s_cbranch_scc0 L_not2")
    A("  s_waitcnt vmcnt(0)")
    A("  s_mov_b64 exec, 1")
    if skew:
        A("  v_mov_b32 v9, s64")
        A("  buffer_store_dword v9, v92, s[36:39], 0 offen offset:4 sc1")
    A("  buffer_store_dword v94, v92, s[36:39], 0 offen sc1")
    A("  s_mov_b64 exec, -1")
    A("L_not2:")
    A("  s_cmp_eq_u32 s47, %d" % chkit)
    A("  s_cbranch_scc0 L_nochk")
    A("  buffer_load_dword v90, v92, s[36:39], 0 offen sc1")
    A("L_nochk:")
    A("  s_cmp_eq_u32 s47, %d" % (chkit + 4))
    A("  s_cbranch_scc0 L_tagok")
    A("  s_mov_b32 s57, 0x200000")
    A("L_tagspin:")
    A("  s_waitcnt vmcnt(0)")
    A("  v_readfirstlane_b32 s56, v90")
    A("  s_cmp_lg_u32 s56, 0")
    A("  s_cbranch_scc1 L_tagok")
    A("  buffer_load_dword v90, v92, s[36:39], 0 offen sc1")
    A("  s_sub_u32 s57, s57, 1")
    A("  s_cbranch_scc0 L_tagspin")
    A("L_tagok:")
    if dyn:
        A("  s_sub_u32 s46, s46, 1")
        A("  s_cmp_lg_u32 s47, s46")
    else:
        A("  s_cmp_lg_u32 s47, 31")
    A("  s_cbranch_scc1 L_cloop")
    A("  s_branch L_tail")
    A("L_final:")
    A("  v_mov_b32 v9, v89")
    A("  v_mov_b32 v109, v88")
    A("  s_nop 0")
    A("  v_permlane32_swap_b32 v89, v9")
    A("  v_add_f32 v89, v89, v9")
    A("  v_mov_b32 v9, v89")
    A("  s_nop 1")
    A("  v_permlane16_swap_b32 v89, v9")
    A("  v_add_f32 v110, v89, v9")
    A("  s_barrier")
    trreads(0x2000, 116)
    pv(PC, 0)
    A("  s_nop 3")
    A("  v_mov_b32 v99, v90")
    A("  v_mov_b32 v111, v90")
    A("  s_mov_b32 vcc_lo, 0xff00ff00")
    A("  s_mov_b32 vcc_hi, 0xff00ff00")
    A("  s_cmp_lg_u32 s3, s23")
    for i in range(8):
        A("  v_mul_f32 v%d, v%d, v95" % (ACC + i, ACC + i))
    def polls():
        for k in range(3):
            A("  buffer_load_dwordx4 v[%d:%d], v91, s[48:51], s%d offen sc1" % (12 + 8 * k, 15 + 8 * k, 61 + k))
            A("  buffer_load_dwordx4 v[%d:%d], v91, s[48:51], s%d offen offset:1024 sc1" % (16 + 8 * k, 19 + 8 * k, 61 + k))
    if spec:
        A("  s_cbranch_scc1 L_bar")
        polls()
    A("L_bar:")
    ST(6)
    A("  s_barrier")
    trreads(0x2000)
    pv(PN, 0)
    A("  s_nop 7")
    for r, d in enumerate([96, 97, 98, 108]):
        A("  v_cndmask_b32 v%d, v%d, v%d, vcc" % (d, ACC + r, ACC + 4 + r))
    A("  s_cbranch_scc0 L_consume")
    if dual:
        A("  buffer_store_dwordx4 v[96:99], v91, s[48:51], s60 offen")
        A("  buffer_store_dwordx4 v[108:111], v91, s[48:51], s60 offen offset:1024")
        A("  s_add_u32 s60, s60, 0x400000")
    if dual != 2:
        A("  buffer_store_dwordx4 v[96:99], v91, s[48:51], s60 offen sc1")
        A("  buffer_store_dwordx4 v[108:111], v91, s[48:51], s60 offen offset:1024 sc1")
    ST(9)
    A("  s_branch L_end")
    A("L_consume:")
    ST(9)
    A("  s_mov_b32 s57, 0x200000")
    if not spec:
        polls()
    A("L_poll:")
    A("  s_waitcnt vmcnt(0)")
    A("  v_xor_b32 v8, v15, v90")
    A("  v_xor_b32 v9, v19, v90")
    A("  v_xor_b32 v10, v23, v90")
    A("  v_or3_b32 v8, v8, v9, v10")
    A("  v_xor_b32 v9, v27, v90")
    A("  v_xor_b32 v10, v31, v90")
    A("  v_or3_b32 v8, v8, v9, v10")
    A("  v_xor_b32 v9, v35, v90")
    A("  v_or_b32 v8, v8, v9")
    A("  v_cmp_ne_u32 vcc, 0, v8")
    A("  s_cbranch_vccz L_pollok")
    if sleep:
        A("  s_sleep %d" % sleep)
    if dual == 1:
        A("  s_cmp_eq_u32 s57, 0x%x" % (0x200000 - around))
        A("  s_cselect_b32 s56, 0x400000, 0")
        for k in range(3):
            A("  s_add_u32 s%d, s%d, s56" % (61 + k, 61 + k))
    polls()
    A("  s_sub_u32 s57, s57, 1")
    A("  s_cbranch_scc0 L_poll")
    A("  s_waitcnt vmcnt(0)")
    A("L_pollok:")
    ST(10)
    A("  v_max3_f32 v8, v109, v17, v25")
    A("  v_max_f32 v8, v8, v33")
    A("  v_sub_f32 v109, v109, v8")
    for k in range(3):
        A("  v_sub_f32 v%d, v%d, v8" % (17 + 8 * k, 17 + 8 * k))
    A("  v_exp_f32 v109, v109")
    for k in range(3):
        A("  v_exp_f32 v%d, v%d" % (17 + 8 * k, 17 + 8 * k))
    A("  v_mul_f32 v110, v109, v110")
    for k in range(3):
        A("  v_fmac_f32 v110, v%d, v%d" % (17 + 8 * k, 18 + 8 * k))
    A("  v_rcp_f32 v110, v110")
    own = [96, 97, 98, 108]
    for r in range(4):
        A("  v_mul_f32 v%d, v109, v%d" % (own[r], own[r]))
    for k in range(3):
        for r in range(4):
            A("  v_fmac_f32 v%d, v%d, v%d" % (own[r], 17 + 8 * k, 12 + 8 * k + (r if r < 3 else 4)))
    for r in range(4):
        A("  v_mul_f32 v%d, v110, v%d" % (own[r], own[r]))
    A("  v_cvt_pk_bf16_f32 v96, v96, v97")
    A("  v_cvt_pk_bf16_f32 v97, v98, v108")
    A("  buffer_store_dwordx2 v[96:97], v93, s[40:43], 0 offen%s" % ["", " sc1", " nt", " sc0 sc1"][outsc])
    A("L_end:")
    if stamps:
        A("  s_waitcnt vmcnt(0)")
        ST(11)
        if da >= 0:
            if skew:
                A("  s_cmp_eq_u32 s72, 0")
                A("  s_cbranch_scc1 L_exit")
                A("  buffer_load_dword v9, v92, s[36:39], 0 offen offset:4 sc1")
                A("  s_waitcnt vmcnt(0)")
                A("  v_readfirstlane_b32 s57, v9")
                if skew == 1:
                    A("  s_sub_u32 s56, s%d, s57" % (64 + 2 * db))
                else:
                    A("  s_sub_u32 s56, s57, s%d" % (64 + 2 * db))
                A("  s_max_i32 s56, s56, 0")
                A("  s_add_u32 s%d, s%d, s56" % (64 + 2 * 8, 64 + 2 * da))
                db = 8
            A("  s_cmp_eq_u32 s%d, 0" % (64 + 2 * da))
            A("  s_cbranch_scc1 L_exit")
            A("  s_cmp_eq_u32 s%d, 0" % (64 + 2 * db))
            A("  s_cbranch_scc1 L_exit")
            A("  s_sub_u32 s56, s%d, s%d" % (64 + 2 * db, 64 + 2 * da))
            A("  s_min_u32 s56, s56, 5000")
            A("  s_mul_i32 s56, s56, %d" % dk)
            A("L_dspin:")
            A("  s_memrealtime s[58:59]")
            A("  s_waitcnt lgkmcnt(0)")
            A("  s_sub_u32 s57, s58, s86")
            A("  s_cmp_lt_u32 s57, s56")
            A("  s_cbranch_scc1 L_dspin")
        else:
            A("  s_add_u32 s24, s20, 0x8000000")
            A("  s_addc_u32 s25, s21, 0")
            A("  s_mov_b32 s26, 0x100000")
            A("  s_mov_b32 s27, 0x20000")
            A("  s_getreg_b32 s58, hwreg(HW_REG_HW_ID)")
            A("  s_mul_i32 s56, s2, %d" % W)
            A("  v_readfirstlane_b32 s57, v128")
            A("  s_add_u32 s56, s56, s57")
            A("  s_lshl_b32 s56, s56, 7")
            A("  s_mov_b64 exec, 1")
            A("  v_mov_b32 v1, 0")
            for i in range(12):
                A("  v_mov_b32 v2, s%d" % (64 + 2 * i))
                A("  v_mov_b32 v3, s%d" % (65 + 2 * i))
                A("  buffer_store_dwordx2 v[2:3], v1, s[24:27], s56 offen offset:%d" % (8 * i))
                A("  s_nop 1")
            A("  s_getreg_b32 s57, hwreg(HW_REG_XCC_ID)")
            A("  v_mov_b32 v2, s57")
            A("  v_mov_b32 v3, s58")
            A("  buffer_store_dwordx2 v[2:3], v1, s[24:27], s56 offen offset:120")
    A("L_exit:")
    A("  s_endpgm")
    if nocomp:
        i0 = L.index("L_cloop:"); i1 = L.index("L_final:")
        L[i0:i1] = [x for x in L[i0:i1] if not (x.startswith("  v_mfma") or x.startswith("  ds_") or x.startswith("  v_exp") or x.startswith("  v_fma") or x.startswith("  v_add_f32") or x.startswith("  v_cvt") or x.startswith("  v_mul_f32"))]
    if nopoll:
        L[:] = [x for x in L if not (x.startswith("  buffer_load_dwordx4 v[") or x.startswith("  buffer_store_dwordx4 v["))]
        i0 = L.index("  s_cbranch_vccz L_pollok"); L[i0] = "  s_branch L_pollok"
    footer(L, 136 if stamps else 128, 96 if stamps else 64)
    s = "\n".join(L) + "\n"
    if stamps:
        s = s.replace("  v_and_b32 v0, 63, v0\n", "  v_and_b32 v0, 63, v0\n  v_mov_b32 v128, v1\n", 1)
    return s

if __name__ == "__main__":
    for a in sys.argv[1:]:
        name, _, kv = a.partition(":")
        kw = {}
        for x in kv.split(","):
            if not x: continue
            k, v = x.split("=")
            kw[k] = int(v)
        open(name, "w").write(gen(**kw))
```

```python
import sys, math, struct
from gen2 import header, footer, f2u, NAME

def gen(nt=1, mapmode=3, stamps=0, N=19, it1=3, it2=6, chkit=14, spec=2, lprio=3, kx=0, li2=0, frac=0, fpar=0,
        agree=1, pretouch=0, pp=0, sleep=0, da=-1, db=-1, dk=10, skew=0, xit=22, outsc=0, trit=8, pk=1, pollfl=0, pubfl=0, light=0, half=0, kasplit=0, vg=128, useo=1, both=0, outpt=0):
    L = []; A = L.append
    NT = " nt" if nt else ""
    W = 5
    def ST(i):
        if stamps and light and i == 4:
            A("  s_mov_b32 s72, 1")
        if stamps and (not light or i == 11):
            A("  s_memrealtime s[%d:%d]" % (64 + 2 * i, 65 + 2 * i))
            A("  s_waitcnt lgkmcnt(0)")
    QL = 65536
    header(L, "; @launch grid=(256,1,1) block=(320,1,1) lds=%d" % (QL + 8192))
    A("  s_load_dwordx16 s[4:19], s[0:1], 0")
    A("  s_load_dwordx2 s[20:21], s[0:1], 64")
    A("  s_cmp_ge_u32 s2, 256")
    A("  s_cbranch_scc1 L_exit")
    if stamps:
        for i in range(1, 12):
            A("  s_mov_b64 s[%d:%d], 0" % (64 + 2 * i, 65 + 2 * i))
        A("  s_memrealtime s[64:65]")
    A("  v_lshrrev_b32 v1, 6, v0")
    A("  v_and_b32 v0, 63, v0")
    A("  v_readfirstlane_b32 s3, v1")
    if mapmode == 0:
        A("  s_lshr_b32 s22, s2, 2")
        A("  s_and_b32 s23, s2, 3")
    else:
        A("  s_and_b32 s22, s2, 7")
        A("  s_lshr_b32 s23, s2, 5")
        A("  s_lshl3_add_u32 s22, s22, s23")
        A("  s_bfe_u32 s23, s2, 0x20003")
    A("  v_lshrrev_b32 v8, 4, v0")
    A("  v_and_b32 v9, 15, v0")
    A("  s_cmp_lg_u32 s3, 0")
    A("  s_cbranch_scc1 L_cons")
    if lprio:
        A("  s_setprio %d" % lprio)
    A("  v_xor_b32 v1, v9, v8")
    A("  v_lshlrev_b32 v1, 4, v1")
    A("  v_lshl_add_u32 v1, v8, 8, v1")
    A("  v_xor_b32 v2, 64, v1")
    A("  v_xor_b32 v3, 0x80, v1")
    A("  v_xor_b32 v4, 0xc0, v1")
    A("  s_lshl_b32 s56, s22, 20")
    A("  s_lshl_b32 s46, s23, 18")
    if kx:
        if kx == 1:
            A("  s_lshr_b32 s52, s2, 5")
        else:
            A("  s_bfe_u32 s52, s2, 0x30003")
        A("  s_lshl_b32 s52, s52, 12")
        A("  s_mov_b32 s45, s46")
        A("  s_xor_b32 s46, s46, s52")
    A("  s_mov_b32 s26, 0x100000")
    A("  s_mov_b32 s27, 0x20000")
    A("  s_xor_b32 s48, s46, 0x1000")
    A("  s_mov_b32 m0, 0")
    A("  v_lshlrev_b32 v5, 1, v8")
    A("  v_xor_b32 v5, v9, v5")
    A("  v_lshlrev_b32 v5, 4, v5")
    A("  v_lshl_add_u32 v5, v8, 8, v5")
    A("  v_xor_b32 v6, 0x80, v5")
    A("  s_mov_b32 s30, 0x100000")
    A("  s_mov_b32 s31, 0x20000")
    if frac:
        A("  s_getreg_b32 s57, hwreg(HW_REG_XCC_ID, 0, 1)")
        A("  s_cmp_eq_u32 s57, %d" % fpar)
        A("  s_cselect_b64 vcc, -1, 0")
    A("  s_mov_b32 s44, 1")
    A("  s_movk_i32 s47, 0x4000")
    A("  s_waitcnt lgkmcnt(0)")
    ST(1)
    A("  s_add_u32 s24, s6, s56")
    A("  s_addc_u32 s25, s7, 0")
    def ld(kind, soff, i):
        if kind == "k":
            A("  buffer_load_dwordx4 v%d, s[24:27], %s offen offset:%d%s lds" % (1 + i, soff, 1024 * i, NT))
        else:
            A("  buffer_load_dwordx4 v%d, s[28:31], %s offen offset:%d%s lds" % (5 + (i & 1), soff, 1024 * i, NT))
    def tile(kind, s0, s1, wait):
        order = [(u, i) for i in range(4) for u in range(2)] if li2 else [(u, i) for u in range(2) for i in range(4)]
        cur = 0
        for n, (u, i) in enumerate(order):
            if u != cur:
                A("  s_xor_b32 m0, m0, 0x1000"); cur = u
                if wait is None: A("  s_nop 0")
            if wait is not None: wait(n)
            ld(kind, s1 if u else s0, i)
    tile("k", "s46", "s48", None)
    A("  s_add_u32 s28, s8, s56")
    A("  s_addc_u32 s29, s9, 0")
    lag = 1 + (N - 1) // 16
    p = (N - 1) % 16
    assert lag == 2 and N <= 31
    fpos = [q for q in [5, 13, 9, 1, 7, 15, 11, 3] if q != p][:frac]
    cnt = [0]
    def mkwait(base, cond):
        def w(i):
            if cond and (base + i) in fpos:
                cnt[0] += 1
                A("  s_waitcnt vmcnt(%d)" % N)
                A("  s_cbranch_vccnz L_fw%d" % cnt[0])
                A("  s_waitcnt vmcnt(%d)" % (N - 1))
                A("L_fw%d:" % cnt[0])
            else:
                A("  s_waitcnt vmcnt(%d)" % (N - 1))
            if base + i == p:
                if cond:
                    A("  s_cmp_eq_u32 s44, 1")
                    A("  s_cbranch_scc1 L_nobar")
                    A("  s_barrier")
                    A("L_nobar:")
                else:
                    A("  s_barrier")
        return w
    A("L_lloop:")
    if kx:
        A("  s_add_u32 s45, s45, 0x2000")
        A("  s_xor_b32 s49, s45, s52")
    else:
        A("  s_add_u32 s49, s46, 0x2000")
    A("  s_xor_b32 s50, s49, 0x1000")
    A("  s_mov_b32 m0, s47")
    tile("k", "s49", "s50", mkwait(0, True))
    A("  s_add_u32 m0, s47, 0x2000")
    tile("v", "s46", "s48", mkwait(8, True))
    A("  s_mov_b32 s46, s49")
    A("  s_mov_b32 s48, s50")
    A("  s_add_u32 s47, s47, 0x4000")
    A("  s_and_b32 s47, s47, 0xffff")
    A("  s_add_u32 s44, s44, 1")
    A("  s_cmp_lt_u32 s44, 32")
    A("  s_cbranch_scc1 L_lloop")
    A("  s_movk_i32 s47, 0x2000")
    A("  s_mov_b32 m0, s47")
    tile("v", "s46", "s48", mkwait(0, False))
    if p >= 8:
        A("  s_waitcnt vmcnt(24)")
        A("  s_barrier")
    ST(2)
    A("  s_waitcnt vmcnt(16)")
    A("  s_barrier")
    A("  s_waitcnt vmcnt(8)")
    A("  s_barrier")
    A("  s_waitcnt vmcnt(0)")
    ST(3)
    A("  s_barrier")
    if stamps:
        A("  s_branch L_end")
    else:
        A("  s_endpgm")
    A("L_cons:")
    Q, S, PC, KF, VF, ACC, PN = 12, 28, 36, 40, 72, 80, 112
    A("  s_sub_u32 s3, s3, 1")
    A("  v_lshlrev_b32 v91, 4, v0")
    A("  s_lshl_b32 s59, s3, 11")
    A("  s_add_u32 s59, s59, %d" % QL)
    A("  s_lshl_b32 s57, s22, 11")
    A("  s_movk_i32 s34, 2048")
    A("  s_mov_b32 s35, 0x20000")
    A("  s_mov_b32 m0, s59")
    A("  v_xor_b32 v1, v8, v9")
    A("  v_lshlrev_b32 v1, 4, v1")
    A("  v_lshl_add_u32 v1, v9, 8, v1")
    A("  v_xor_b32 v2, 64, v1")
    A("  v_xor_b32 v3, 0x80, v1")
    A("  v_xor_b32 v4, 0xc0, v1")
    A("  v_bfe_u32 v5, v0, 2, 4")
    A("  v_and_b32 v6, 7, v5")
    A("  v_lshlrev_b32 v6, 1, v6")
    A("  v_bfe_u32 v7, v0, 1, 1")
    A("  s_lshl_b32 s56, s3, 2")
    A("  v_add_u32 v7, s56, v7")
    A("  v_xor_b32 v6, v6, v7")
    A("  v_lshlrev_b32 v6, 4, v6")
    A("  v_lshl_add_u32 v5, v5, 8, v6")
    A("  v_and_b32 v6, 1, v0")
    A("  v_lshl_add_u32 v5, v6, 3, v5")
    A("  v_xor_b32 v6, 32, v5")
    A("  v_and_b32 v7, 7, v0")
    A("  v_lshlrev_b32 v7, 8, v7")
    A("  v_lshlrev_b32 v10, 4, v8")
    A("  v_lshlrev_b32 v11, 3, v8")
    A("  s_lshl_b32 s56, s3, 6")
    A("  v_add_u32 v11, s56, v11")
    A("  v_bfe_u32 v93, v0, 3, 1")
    A("  v_lshl_add_u32 v11, v93, 5, v11")
    A("  v_add_u32 v93, v11, v7")
    A("  v_add3_u32 v7, v7, v10, s59")
    A("  v_and_b32 v0, 0x70, v91")
    c = (128 ** -0.5) * math.log2(math.e)
    A("  s_mov_b32 s53, 0x%08x" % f2u(c))
    A("  s_mov_b32 s54, s53")
    A("  s_mov_b32 s55, s53")
    A("  v_mov_b32 v88, 0xff800000")
    A("  v_mov_b32 v89, 0")
    for i in range(4):
        A("  v_mov_b64 v[%d:%d], 0" % (ACC + 2 * i, ACC + 2 * i + 1))
    A("  v_mov_b32 v90, 0")
    A("  v_mov_b32 v92, 0")
    A("  v_mov_b32 v95, 1.0")
    A("  s_waitcnt lgkmcnt(0)")
    A("  s_add_u32 s32, s4, s57")
    A("  s_addc_u32 s33, s5, 0")
    A("  buffer_load_dwordx4 v91, s[32:35], 0 offen lds")
    A("  buffer_load_dwordx4 v91, s[32:35], 0 offen offset:1024 lds")
    A("  s_lshl_b32 s56, s22, 15")
    A("  s_add_u32 s48, s20, s56")
    A("  s_addc_u32 s49, s21, 0")
    A("  s_mov_b32 s50, 0x8000")
    A("  s_mov_b32 s51, 0x20000")
    A("  s_mov_b32 s36, s18")
    A("  s_mov_b32 s37, s19")
    A("  s_movk_i32 s38, 256")
    A("  s_mov_b32 s39, 0x20000")
    A("  s_lshl_b32 s56, s22, 11")
    A("  s_add_u32 s40, s16, s56")
    A("  s_addc_u32 s41, s17, 0")
    A("  s_movk_i32 s42, 2048")
    A("  s_mov_b32 s43, 0x20000")
    A("  s_lshl_b32 s57, s3, 13")
    A("  s_lshl_b32 s56, s23, 11")
    A("  s_add_u32 s60, s56, s57")
    A("  s_lshl_b32 s57, s23, 13")
    for k in range(1, 4):
        A("  s_add_u32 s56, s23, %d" % k)
        A("  s_and_b32 s56, s56, 3")
        A("  s_lshl_b32 s56, s56, 11")
        A("  s_add_u32 s%d, s56, s57" % (60 + k))
    A("  s_add_u32 s24, s20, 0x200000")
    A("  s_addc_u32 s25, s21, 0")
    A("  s_mov_b32 s26, 0x20000")
    A("  s_mov_b32 s27, 0x20000")
    A("  s_lshl_b32 s28, s22, 8")
    A("  s_lshl3_add_u32 s28, s3, s28")
    A("  s_add_u32 s28, s28, 0x10000")
    A("  s_getreg_b32 s30, hwreg(HW_REG_XCC_ID, 0, 4)")
    A("  s_cmp_eq_u32 s3, s23")
    A("  s_cselect_b32 s31, 0, 2")
    A("  s_cselect_b32 s29, %d, -1" % trit)
    A("  s_cselect_b32 s46, %d, -1" % (trit + 3))
    A("  s_xor_b32 s56, s3, 3")
    A("  s_or_b32 s56, s56, s2")
    A("  s_cselect_b32 s44, -1, %d" % it1)
    A("  s_cselect_b32 s45, -1, %d" % it2)
    A("  s_cbranch_scc1 L_notag0")
    A("  buffer_load_dword v94, v92, s[24:27], 0 offen sc1")
    A("L_notag0:")
    A("  s_barrier")
    ST(4)
    def kreads(regs, off):
        for u in range(2):
            for j in range(4):
                r = KF + 16 * u + 4 * j
                A("  ds_read_b128 v[%d:%d], v%d offset:%d" % (r, r + 3, regs[j], off + 4096 * u))
    kreads([1, 2, 3, 4], 0)
    A("  s_waitcnt vmcnt(0)")
    for j in range(4):
        A("  ds_read_b128 v[%d:%d], v7 offset:%d" % (Q + 4 * j, Q + 3 + 4 * j, 64 * j))
    ev = [it1, it2, trit, trit + 3, chkit, chkit + 4, xit, xit + 3, 31]
    A("  s_mov_b32 s32, 0x%x" % sum(1 << e for e in set(ev)))
    A("  s_mov_b32 s33, 1")
    A("  s_mov_b32 s47, 0")
    A("  s_mov_b32 s52, 0")
    A("  s_waitcnt lgkmcnt(0)")
    A("  s_branch L_qk")
    def rescale():
        if pk:
            for i in range(0, 8, 2):
                A("  v_pk_mul_f32 v[%d:%d], v[%d:%d], v[94:95] op_sel:[0,1] op_sel_hi:[1,1]" % (ACC + i, ACC + i + 1, ACC + i, ACC + i + 1))
        else:
            for i in range(8):
                A("  v_mul_f32 v%d, v%d, v95" % (ACC + i, ACC + i))
    def trreads(off, a0=104):
        A("  ds_read_b64_tr_b16 v[%d:%d], v%d offset:%d" % (VF, VF + 1, a0, off))
        A("  ds_read_b64_tr_b16 v[%d:%d], v%d offset:%d" % (VF + 2, VF + 3, a0, off + 4096))
        A("  ds_read_b64_tr_b16 v[%d:%d], v%d offset:%d" % (VF + 4, VF + 5, a0 + 1, off))
        A("  ds_read_b64_tr_b16 v[%d:%d], v%d offset:%d" % (VF + 6, VF + 7, a0 + 1, off + 4096))
    def pv(Pr, n):
        A("  s_waitcnt lgkmcnt(%d)" % (n + 2))
        A("  v_mfma_f32_16x16x32_bf16 v[%d:%d], v[%d:%d], v[%d:%d], v[%d:%d]" % (ACC, ACC + 3, VF, VF + 3, Pr, Pr + 3, ACC, ACC + 3))
        A("  s_waitcnt lgkmcnt(%d)" % n)
        A("  v_mfma_f32_16x16x32_bf16 v[%d:%d], v[%d:%d], v[%d:%d], v[%d:%d]" % (ACC + 4, ACC + 7, VF + 4, VF + 7, Pr, Pr + 3, ACC + 4, ACC + 7))
    A("L_cloop:")
    A("  s_barrier")
    trreads(0x2000)
    kreads([100, 101, 102, 103], 0)
    rescale()
    pv(PN, 8)
    A("L_qk:")
    for u in range(2):
        for j in range(4):
            d = S + 4 * u
            a = KF + 16 * u + 4 * j
            cc = "0" if j == 0 else "v[%d:%d]" % (d, d + 3)
            A("  s_waitcnt lgkmcnt(%d)" % (7 - 4 * u - j))
            A("  v_mfma_f32_16x16x32_bf16 v[%d:%d], v[%d:%d], v[%d:%d], %s" % (d, d + 3, a, a + 3, Q + 4 * j, Q + 3 + 4 * j, cc))
    A("  s_add_u32 s52, s52, 0x4000")
    A("  s_and_b32 s52, s52, 0xffff")
    for k in range(6):
        A("  v_add_u32 v%d, s52, v%d" % (100 + k, 1 + k))
    A("  v_mov_b32 v95, 1.0")
    A("  v_max3_f32 v8, v%d, v%d, v%d" % (S, S + 1, S + 2))
    A("  v_max3_f32 v8, v8, v%d, v%d" % (S + 3, S + 4))
    A("  v_max3_f32 v8, v8, v%d, v%d" % (S + 5, S + 6))
    A("  v_max_f32 v8, v8, v%d" % (S + 7))
    A("  v_mul_f32 v8, s53, v8")
    A("  v_cmp_gt_f32 vcc, v8, v88")
    A("  s_cbranch_vccz L_skip")
    A("  v_mov_b32 v9, v8")
    A("  s_nop 1")
    A("  v_permlane32_swap_b32 v8, v9")
    A("  v_max_f32 v8, v8, v9")
    A("  v_mov_b32 v9, v8")
    A("  s_nop 1")
    A("  v_permlane16_swap_b32 v8, v9")
    A("  v_max3_f32 v8, v8, v9, v88")
    A("  v_sub_f32 v95, v88, v8")
    A("  v_exp_f32 v95, v95")
    A("  v_mov_b32 v88, v8")
    A("  v_mul_f32 v89, v89, v95")
    A("L_skip:")
    if pk:
        for i in range(0, 8, 2):
            A("  v_pk_fma_f32 v[%d:%d], v[%d:%d], s[54:55], v[88:89] op_sel_hi:[1,1,0] neg_lo:[0,0,1] neg_hi:[0,0,1]" % (S + i, S + i + 1, S + i, S + i + 1))
    else:
        for i in range(8):
            A("  v_fma_f32 v%d, v%d, s53, -v88" % (S + i, S + i))
    for i in range(8):
        A("  v_exp_f32 v%d, v%d" % (S + i, S + i))
    for m in range(4):
        A("  v_cvt_pk_bf16_f32 v%d, v%d, v%d" % (PN + m, S + 2 * m, S + 1 + 2 * m))
    if pk:
        A("  v_pk_add_f32 v[%d:%d], v[%d:%d], v[%d:%d]" % (S, S + 1, S, S + 1, S + 2, S + 3))
        A("  v_pk_add_f32 v[%d:%d], v[%d:%d], v[%d:%d]" % (S + 4, S + 5, S + 4, S + 5, S + 6, S + 7))
        A("  v_pk_add_f32 v[%d:%d], v[%d:%d], v[%d:%d]" % (S, S + 1, S, S + 1, S + 4, S + 5))
        A("  v_add_f32 v89, v89, v%d" % S)
        A("  v_add_f32 v89, v89, v%d" % (S + 1))
    else:
        for i in range(8):
            A("  v_add_f32 v89, v89, v%d" % (S + i))
    A("  s_add_u32 s47, s47, 1")
    A("  s_bitcmp1_b64 s[32:33], s47")
    A("  s_cbranch_scc0 L_cloop")
    A("  s_cmp_eq_u32 s47, 32")
    A("  s_cbranch_scc1 L_final")
    A("  s_cmp_eq_u32 s47, 31")
    A("  s_cbranch_scc1 L_lastk")
    A("  s_cmp_eq_u32 s47, s44")
    A("  s_cbranch_scc0 L_not1")
    A("  s_waitcnt vmcnt(0)")
    A("  v_add_u32 v94, 1, v94")
    A("  v_max_u32 v94, 1, v94")
    A("  s_mov_b64 exec, 1")
    A("  buffer_store_dword v94, v92, s[24:27], 0 offen sc1")
    A("  s_mov_b64 exec, -1")
    A("L_not1:")
    A("  s_cmp_eq_u32 s47, s45")
    A("  s_cbranch_scc0 L_not2")
    A("  s_waitcnt vmcnt(0)")
    A("  s_mov_b64 exec, 1")
    if skew:
        A("  v_mov_b32 v9, s64")
        A("  buffer_store_dword v9, v92, s[36:39], 0 offen offset:4 sc1")
    A("  buffer_store_dword v94, v92, s[36:39], 0 offen sc1")
    A("  s_mov_b64 exec, -1")
    A("L_not2:")
    A("  s_cmp_eq_u32 s47, s29")
    A("  s_cbranch_scc0 L_notr1")
    A("  s_lshl_b32 s57, s22, 8")
    A("  s_add_u32 s4, s10, s57")
    A("  s_addc_u32 s5, s11, 0")
    A("  s_movk_i32 s6, 256")
    A("  s_mov_b32 s7, 0x20000")
    TK = [36, 96, 108, 116]
    for j in range(4):
        A("  buffer_load_dwordx4 v[%d:%d], v10, s[4:7], 0 offen offset:%d" % (TK[j], TK[j] + 3, 64 * j))
    A("  s_add_u32 s4, s12, s57")
    A("  s_addc_u32 s5, s13, 0")
    A("  s_lshr_b32 s57, s22, 2")
    A("  buffer_load_dwordx2 v[120:121], v11, s[4:7], 0 offen")
    A("  s_mov_b32 s4, s14")
    A("  s_mov_b32 s5, s15")
    A("  s_movk_i32 s6, 32")
    A("  s_lshl_b32 s57, s57, 1")
    A("  buffer_load_ushort v122, v92, s[4:7], s57 offen")
    if outpt == 1:
        A("  buffer_load_dwordx2 v[106:107], v93, s[40:43], 0 offen")
    A("L_notr1:")
    A("  s_cmp_eq_u32 s47, s46")
    A("  s_cbranch_scc0 L_notr2")
    A("  s_waitcnt vmcnt(0)")
    for j in range(4):
        cc = "0" if j == 0 else "v[124:127]"
        A("  v_mfma_f32_16x16x32_bf16 v[124:127], v[%d:%d], v[%d:%d], %s" % (TK[j], TK[j] + 3, Q + 4 * j, Q + 3 + 4 * j, cc))
    A("  v_lshlrev_b32 v122, 16, v122")
    A("  v_sub_f32 v122, 1.0, v122")
    A("  v_mul_f32 v122, 0x%08x, v122" % f2u(-1e9 * math.log2(math.e)))
    A("  v_and_b32 v119, 0xffff0000, v120")
    A("  v_lshlrev_b32 v118, 16, v120")
    A("  v_lshlrev_b32 v120, 16, v121")
    A("  v_and_b32 v121, 0xffff0000, v121")
    A("  s_nop 1")
    A("  v_fma_f32 v122, v124, s53, v122")
    A("L_notr2:")
    A("  s_cmp_eq_u32 s47, %d" % chkit)
    A("  s_cbranch_scc0 L_nochk")
    A("  buffer_load_dword v90, v92, s[36:39], 0 offen sc1")
    A("L_nochk:")
    A("  s_cmp_eq_u32 s47, %d" % (chkit + 4))
    A("  s_cbranch_scc0 L_tagdone")
    A("  s_mov_b32 s57, 0x200000")
    A("L_tagspin:")
    A("  s_waitcnt vmcnt(0)")
    A("  v_readfirstlane_b32 s56, v90")
    A("  s_cmp_lg_u32 s56, 0")
    A("  s_cbranch_scc1 L_tagok")
    A("  buffer_load_dword v90, v92, s[36:39], 0 offen sc1")
    A("  s_sub_u32 s57, s57, 1")
    A("  s_cbranch_scc0 L_tagspin")
    A("L_tagok:")
    if agree:
        A("  s_cmp_lg_u32 s31, 0")
        A("  s_cbranch_scc1 L_tagdone")
        A("  v_mov_b32 v8, v90")
        A("  v_mov_b32 v9, s30")
        A("  s_mov_b64 exec, 1")
        A("  buffer_store_dwordx2 v[8:9], v92, s[24:27], s28 offen sc1")
        A("  s_mov_b64 exec, -1")
    A("L_tagdone:")
    if agree:
        A("  s_cmp_eq_u32 s47, %d" % xit)
        A("  s_cbranch_scc0 L_nox1")
        A("  buffer_load_dwordx2 v[106:107], v92, s[24:27], s28 offen sc1")
        A("L_nox1:")
        A("  s_cmp_eq_u32 s47, %d" % (xit + 3))
        A("  s_cbranch_scc0 L_nox2")
        A("  s_waitcnt vmcnt(0)")
        A("  v_readfirstlane_b32 s57, v106")
        A("  v_readfirstlane_b32 s58, v107")
        A("  s_xor_b32 s57, s57, s56")
        A("  s_xor_b32 s58, s58, s30")
        A("  s_or_b32 s57, s57, s58")
        A("  s_cbranch_scc1 L_nox2")
        A("  s_lshr_b32 s31, s31, 1")
        if pretouch:
            A("  s_cbranch_scc0 L_nox2")
            A("  v_mov_b64 v[98:99], 0")
            A("  buffer_store_dwordx4 v[96:99], v91, s[48:51], s60 offen")
            A("  buffer_store_dwordx4 v[96:99], v0, s[48:51], s60 offen offset:1024")
        A("L_nox2:")
    A("  s_branch L_cloop")
    A("L_lastk:")
    A("  s_barrier")
    kreads([100, 101, 102, 103], 0)
    rescale()
    A("  v_mov_b64 v[%d:%d], v[%d:%d]" % (PC, PC + 1, PN, PN + 1))
    A("  v_mov_b64 v[%d:%d], v[%d:%d]" % (PC + 2, PC + 3, PN + 2, PN + 3))
    A("  v_mov_b64 v[116:117], v[104:105]")
    A("  s_branch L_qk")
    A("L_final:")
    A("  v_mov_b32 v9, v89")
    A("  v_mov_b32 v108, v88")
    A("  v_mov_b32 v99, v90")
    A("  v_permlane32_swap_b32 v89, v9")
    A("  v_add_f32 v89, v89, v9")
    A("  v_mov_b32 v9, v89")
    A("  v_mov_b32 v110, v90")
    A("  s_mov_b32 s57, 0x200000")
    A("  v_permlane16_swap_b32 v89, v9")
    A("  v_add_f32 v109, v89, v9")
    PF = ["sc1", "nt", "sc0 nt", "sc0", "sc1 nt"][pollfl]
    def spoll():
        for k in range(3):
            A("  buffer_load_dwordx4 v[%d:%d], v0, s[48:51], s%d offen offset:1024 %s" % (24 + 4 * k, 27 + 4 * k, 61 + k, PF))
    def opoll():
        for k in range(3):
            A("  buffer_load_dwordx4 v[%d:%d], v91, s[48:51], s%d offen %s" % (12 + 4 * k, 15 + 4 * k, 61 + k, PF))
    A("  s_cmp_eq_u32 s31, 1")
    A("  s_cbranch_scc0 L_fin2")
    A("  s_mov_b64 exec, 0xff")
    A("  buffer_store_dwordx4 v[108:111], v0, s[48:51], s60 offen offset:1024")
    A("  s_mov_b64 exec, -1")
    A("L_fin3:")
    A("  s_barrier")
    trreads(0x2000, 116)
    A("  s_mov_b32 s4, 0x07060501")
    A("  s_mov_b32 s5, 0x07060502")
    A("  s_mov_b32 s6, 0x07060503")
    pv(PC, 0)
    A("  s_mov_b32 vcc_lo, 0xff00ff00")
    A("  s_mov_b32 vcc_hi, 0xff00ff00")
    A("  s_cmp_eq_u32 s31, 1")
    A("  s_nop 4")
    rescale()
    ST(6)
    A("  s_barrier")
    trreads(0x2000)
    pv(PN, 0)
    A("  s_nop 7")
    for r, d in [(3, 111), (0, 96), (1, 97), (2, 98)]:
        A("  v_cndmask_b32 v%d, v%d, v%d, vcc" % (d, ACC + r, ACC + 4 + r))
    A("  s_cbranch_scc0 L_other")
    pf = ["", " sc0", " nt"][pubfl]
    def pack():
        for r in range(3):
            A("  v_perm_b32 v%d, v%d, v111, s%d" % (96 + r, 96 + r, 4 + r))
    pack()
    A("  buffer_store_dwordx4 v[96:99], v91, s[48:51], s60 offen%s" % pf)
    ST(9)
    A("  s_branch L_end" if stamps else "  s_endpgm")
    A("L_other:")
    A("  s_cmp_eq_u32 s31, 0")
    A("  s_cbranch_scc1 L_consume")
    pack()
    A("  buffer_store_dwordx4 v[96:99], v91, s[48:51], s60 offen sc1")
    ST(9)
    A("  s_branch L_end" if stamps else "  s_endpgm")
    A("L_fin2:")
    A("  s_cmp_eq_u32 s31, 0")
    A("  s_cbranch_scc1 L_fin4")
    A("  s_mov_b64 exec, 0xff")
    A("  buffer_store_dwordx4 v[108:111], v0, s[48:51], s60 offen offset:1024 sc1")
    A("  s_mov_b64 exec, -1")
    A("  s_branch L_fin3")
    A("L_fin4:")
    if outpt == 2:
        A("  buffer_load_dwordx2 v[106:107], v93, s[40:43], 0 offen")
    spoll()
    if spec == 2: opoll()
    A("  v_max_f32 v8, v108, v122")
    A("  v_sub_f32 v123, v108, v8")
    A("  v_sub_f32 v122, v122, v8")
    A("  v_exp_f32 v123, v123")
    A("  v_exp_f32 v122, v122")
    A("  v_mov_b32 v108, v8")
    A("  v_fma_f32 v109, v109, v123, v122")
    for r in range(4):
        A("  v_mul_f32 v%d, v122, v%d" % (118 + r, 118 + r))
    A("  s_branch L_fin3")
    A("L_consume:")
    for r, d in enumerate([96, 97, 98, 111]):
        A("  v_fma_f32 v%d, v%d, v123, v%d" % (96 + r, d, 118 + r))
    ST(9)
    A("  s_mov_b32 s4, 0x04000c0c")
    A("  s_mov_b32 s5, 0x0706000c")
    A("L_spoll:")
    A("  s_waitcnt vmcnt(0)")
    A("  v_xor_b32 v8, v26, v90")
    A("  v_xor_b32 v9, v30, v90")
    A("  v_xor_b32 v10, v34, v90")
    A("  v_or3_b32 v8, v8, v9, v10")
    A("  v_cmp_ne_u32 vcc, 0, v8")
    A("  s_cbranch_vccz L_sok")
    spoll()
    if both: opoll()
    A("  s_sub_u32 s57, s57, 1")
    A("  s_cbranch_scc0 L_spoll")
    A("  s_waitcnt vmcnt(0)")
    A("L_sok:")
    if useo:
        A("  v_xor_b32 v8, v15, v90")
        A("  v_xor_b32 v9, v19, v90")
        A("  v_xor_b32 v10, v23, v90")
        A("  v_or3_b32 v8, v8, v9, v10")
        A("  v_cmp_ne_u32 vcc, 0, v8")
        A("  s_cbranch_vccz L_noo")
    opoll()
    A("L_noo:")
    A("  v_max3_f32 v8, v108, v24, v28")
    A("  v_max_f32 v8, v8, v32")
    A("  v_sub_f32 v108, v108, v8")
    for k in range(3):
        A("  v_sub_f32 v%d, v%d, v8" % (24 + 4 * k, 24 + 4 * k))
    A("  v_exp_f32 v108, v108")
    for k in range(3):
        A("  v_exp_f32 v%d, v%d" % (24 + 4 * k, 24 + 4 * k))
    A("  v_mul_f32 v109, v108, v109")
    for k in range(3):
        A("  v_fmac_f32 v109, v%d, v%d" % (24 + 4 * k, 25 + 4 * k))
    A("  v_rcp_f32 v109, v109")
    A("  s_mov_b32 s57, 0x200000")
    A("  v_mul_f32 v108, v108, v109")
    for k in range(3):
        A("  v_mul_f32 v%d, v%d, v109" % (24 + 4 * k, 24 + 4 * k))
    A("  v_pk_mul_f32 v[96:97], v[96:97], v[108:109] op_sel_hi:[1,0]")
    A("  v_pk_mul_f32 v[98:99], v[98:99], v[108:109] op_sel_hi:[1,0]")
    A("L_opoll:")
    A("  s_waitcnt vmcnt(0)")
    A("  v_xor_b32 v8, v15, v90")
    A("  v_xor_b32 v9, v19, v90")
    A("  v_xor_b32 v10, v23, v90")
    A("  v_or3_b32 v8, v8, v9, v10")
    A("  v_cmp_ne_u32 vcc, 0, v8")
    A("  s_cbranch_vccz L_ook")
    opoll()
    A("  s_sub_u32 s57, s57, 1")
    A("  s_cbranch_scc0 L_opoll")
    A("  s_waitcnt vmcnt(0)")
    A("L_ook:")
    ST(10)
    for k in range(3):
        b = 12 + 4 * k
        A("  v_perm_b32 v%d, v%d, v%d, s4" % (b + 3, b + 2, b + 1))
    for k in range(3):
        b = 12 + 4 * k
        A("  v_pk_fma_f32 v[96:97], v[%d:%d], v[%d:%d], v[96:97] op_sel_hi:[1,0,1]" % (b, b + 1, 24 + 4 * k, 25 + 4 * k))
        A("  v_perm_b32 v%d, v%d, v%d, s5" % (b + 3, b + 3, b))
    for k in range(3):
        b = 12 + 4 * k
        A("  v_pk_fma_f32 v[98:99], v[%d:%d], v[%d:%d], v[98:99] op_sel_hi:[1,0,1]" % (b + 2, b + 3, 24 + 4 * k, 25 + 4 * k))
    A("  v_cvt_pk_bf16_f32 v96, v96, v97")
    A("  v_cvt_pk_bf16_f32 v97, v98, v99")
    A("  buffer_store_dwordx2 v[96:97], v93, s[40:43], 0 offen%s" % ["", " sc1", " nt", " sc0 sc1"][outsc])
    if stamps:
        A("L_end:")
        A("  s_waitcnt vmcnt(0)")
        ST(11)
        if da >= 0:
            if skew:
                A("  s_cmp_eq_u32 s72, 0")
                A("  s_cbranch_scc1 L_exit")
                A("  buffer_load_dword v9, v92, s[36:39], 0 offen offset:4 sc1")
                A("  s_waitcnt vmcnt(0)")
                A("  v_readfirstlane_b32 s57, v9")
                if skew == 1:
                    A("  s_sub_u32 s56, s%d, s57" % (64 + 2 * db))
                else:
                    A("  s_sub_u32 s56, s57, s%d" % (64 + 2 * db))
                A("  s_max_i32 s56, s56, 0")
                A("  s_add_u32 s%d, s%d, s56" % (64 + 2 * 8, 64 + 2 * da))
                db = 8
            A("  s_cmp_eq_u32 s%d, 0" % (64 + 2 * da))
            A("  s_cbranch_scc1 L_exit")
            A("  s_cmp_eq_u32 s%d, 0" % (64 + 2 * db))
            A("  s_cbranch_scc1 L_exit")
            A("  s_sub_u32 s56, s%d, s%d" % (64 + 2 * db, 64 + 2 * da))
            A("  s_min_u32 s56, s56, 5000")
            A("  s_mul_i32 s56, s56, %d" % dk)
            A("L_dspin:")
            A("  s_memrealtime s[58:59]")
            A("  s_waitcnt lgkmcnt(0)")
            A("  s_sub_u32 s57, s58, s86")
            A("  s_cmp_lt_u32 s57, s56")
            A("  s_cbranch_scc1 L_dspin")
        else:
            A("  s_add_u32 s24, s20, 0x8000000")
            A("  s_addc_u32 s25, s21, 0")
            A("  s_mov_b32 s26, 0x100000")
            A("  s_mov_b32 s27, 0x20000")
            A("  s_getreg_b32 s58, hwreg(HW_REG_HW_ID)")
            A("  s_mul_i32 s56, s2, %d" % W)
            A("  v_readfirstlane_b32 s57, v128")
            A("  s_add_u32 s56, s56, s57")
            A("  s_lshl_b32 s56, s56, 7")
            A("  s_mov_b64 exec, 1")
            A("  v_mov_b32 v1, 0")
            for i in range(12):
                A("  v_mov_b32 v2, s%d" % (64 + 2 * i))
                A("  v_mov_b32 v3, s%d" % (65 + 2 * i))
                A("  buffer_store_dwordx2 v[2:3], v1, s[24:27], s56 offen offset:%d" % (8 * i))
                A("  s_nop 1")
            A("  s_getreg_b32 s57, hwreg(HW_REG_XCC_ID)")
            A("  v_mov_b32 v2, s57")
            A("  v_mov_b32 v3, s58")
            A("  buffer_store_dwordx2 v[2:3], v1, s[24:27], s56 offen offset:120")
    A("L_exit:")
    A("  s_endpgm")
    footer(L, 136 if stamps else vg, 96 if stamps else 64)
    s = "\n".join(L) + "\n"
    if stamps:
        s = s.replace("  v_and_b32 v0, 63, v0\n", "  v_and_b32 v0, 63, v0\n  v_mov_b32 v128, v1\n", 1)
    return s

if __name__ == "__main__":
    for a in sys.argv[1:]:
        name, _, kv = a.partition(":")
        kw = {}
        for x in kv.split(","):
            if not x: continue
            k, v = x.split("=")
            kw[k] = int(v)
        open(name, "w").write(gen(**kw))
```

```python
import sys, math, struct
from gen2 import header, footer, f2u, NAME

def gen(nt=1, mapmode=3, stamps=0, N=19, it1=3, it2=6, chkit=14, spec=2, lprio=3, kx=0, li2=0, frac=0, fpar=0,
        agree=1, pretouch=0, pp=0, sleep=0, da=-1, db=-1, dk=10, skew=0, xit=22, outsc=0, trit=8, pk=1, pollfl=0, pubfl=0, light=0, half=0, kasplit=0, vg=128, useo=1, both=0, outpt=0, sel=-1):
    L = []; A = L.append
    NT = " nt" if nt else ""
    W = 5
    def ST(i):
        if stamps and light and i == 4:
            A("  s_mov_b32 s72, 1")
        if stamps and (not light or i == 11):
            A("  s_memrealtime s[%d:%d]" % (64 + 2 * i, 65 + 2 * i))
            A("  s_waitcnt lgkmcnt(0)")
    QL = 65536
    header(L, "; @launch grid=(256,1,1) block=(320,1,1) lds=%d" % (QL + 8192))
    A("  s_load_dwordx16 s[4:19], s[0:1], 0")
    A("  s_load_dwordx2 s[20:21], s[0:1], 64")
    A("  s_cmp_ge_u32 s2, 256")
    A("  s_cbranch_scc1 L_exit")
    if stamps:
        for i in range(1, 12):
            A("  s_mov_b64 s[%d:%d], 0" % (64 + 2 * i, 65 + 2 * i))
        A("  s_memrealtime s[64:65]")
    A("  v_lshrrev_b32 v1, 6, v0")
    A("  v_and_b32 v0, 63, v0")
    A("  v_readfirstlane_b32 s3, v1")
    if mapmode == 0:
        A("  s_lshr_b32 s22, s2, 2")
        A("  s_and_b32 s23, s2, 3")
    else:
        A("  s_and_b32 s22, s2, 7")
        A("  s_lshr_b32 s23, s2, 5")
        A("  s_lshl3_add_u32 s22, s22, s23")
        A("  s_bfe_u32 s23, s2, 0x20003")
    A("  v_lshrrev_b32 v8, 4, v0")
    A("  v_and_b32 v9, 15, v0")
    A("  s_cmp_lg_u32 s3, 0")
    A("  s_cbranch_scc1 L_cons")
    if lprio:
        A("  s_setprio %d" % lprio)
    A("  v_xor_b32 v1, v9, v8")
    A("  v_lshlrev_b32 v1, 4, v1")
    A("  v_lshl_add_u32 v1, v8, 8, v1")
    A("  v_xor_b32 v2, 64, v1")
    A("  v_xor_b32 v3, 0x80, v1")
    A("  v_xor_b32 v4, 0xc0, v1")
    A("  s_lshl_b32 s56, s22, 20")
    A("  s_lshl_b32 s46, s23, 18")
    if kx:
        if kx == 1:
            A("  s_lshr_b32 s52, s2, 5")
        else:
            A("  s_bfe_u32 s52, s2, 0x30003")
        A("  s_lshl_b32 s52, s52, 12")
        A("  s_mov_b32 s45, s46")
        A("  s_xor_b32 s46, s46, s52")
    A("  s_mov_b32 s26, 0x100000")
    A("  s_mov_b32 s27, 0x20000")
    A("  s_xor_b32 s48, s46, 0x1000")
    A("  s_mov_b32 m0, 0")
    A("  v_lshlrev_b32 v5, 1, v8")
    A("  v_xor_b32 v5, v9, v5")
    A("  v_lshlrev_b32 v5, 4, v5")
    A("  v_lshl_add_u32 v5, v8, 8, v5")
    A("  v_xor_b32 v6, 0x80, v5")
    A("  s_mov_b32 s30, 0x100000")
    A("  s_mov_b32 s31, 0x20000")
    if frac:
        A("  s_getreg_b32 s57, hwreg(HW_REG_XCC_ID, 0, 1)")
        A("  s_cmp_eq_u32 s57, %d" % fpar)
        A("  s_cselect_b64 vcc, -1, 0")
    A("  s_mov_b32 s44, 1")
    A("  s_movk_i32 s47, 0x4000")
    A("  s_waitcnt lgkmcnt(0)")
    ST(1)
    A("  s_add_u32 s24, s6, s56")
    A("  s_addc_u32 s25, s7, 0")
    def ld(kind, soff, i):
        if kind == "k":
            A("  buffer_load_dwordx4 v%d, s[24:27], %s offen offset:%d%s lds" % (1 + i, soff, 1024 * i, NT))
        else:
            A("  buffer_load_dwordx4 v%d, s[28:31], %s offen offset:%d%s lds" % (5 + (i & 1), soff, 1024 * i, NT))
    def tile(kind, s0, s1, wait):
        order = [(u, i) for i in range(4) for u in range(2)] if li2 else [(u, i) for u in range(2) for i in range(4)]
        cur = 0
        for n, (u, i) in enumerate(order):
            if u != cur:
                A("  s_xor_b32 m0, m0, 0x1000"); cur = u
                if wait is None: A("  s_nop 0")
            if wait is not None: wait(n)
            ld(kind, s1 if u else s0, i)
    tile("k", "s46", "s48", None)
    A("  s_add_u32 s28, s8, s56")
    A("  s_addc_u32 s29, s9, 0")
    lag = 1 + (N - 1) // 16
    p = (N - 1) % 16
    assert lag == 2 and N <= 31
    fpos = [q for q in [5, 13, 9, 1, 7, 15, 11, 3] if q != p][:frac]
    cnt = [0]
    def mkwait(base, cond):
        def w(i):
            if cond and (base + i) in fpos:
                cnt[0] += 1
                A("  s_waitcnt vmcnt(%d)" % N)
                A("  s_cbranch_vccnz L_fw%d" % cnt[0])
                A("  s_waitcnt vmcnt(%d)" % (N - 1))
                A("L_fw%d:" % cnt[0])
            else:
                A("  s_waitcnt vmcnt(%d)" % (N - 1))
            if base + i == p:
                if cond:
                    A("  s_cmp_eq_u32 s44, 1")
                    A("  s_cbranch_scc1 L_nobar")
                    A("  s_barrier")
                    A("L_nobar:")
                else:
                    A("  s_barrier")
        return w
    A("L_lloop:")
    if kx:
        A("  s_add_u32 s45, s45, 0x2000")
        A("  s_xor_b32 s49, s45, s52")
    else:
        A("  s_add_u32 s49, s46, 0x2000")
    A("  s_xor_b32 s50, s49, 0x1000")
    A("  s_mov_b32 m0, s47")
    tile("k", "s49", "s50", mkwait(0, True))
    A("  s_add_u32 m0, s47, 0x2000")
    tile("v", "s46", "s48", mkwait(8, True))
    A("  s_mov_b32 s46, s49")
    A("  s_mov_b32 s48, s50")
    A("  s_add_u32 s47, s47, 0x4000")
    A("  s_and_b32 s47, s47, 0xffff")
    A("  s_add_u32 s44, s44, 1")
    A("  s_cmp_lt_u32 s44, 32")
    A("  s_cbranch_scc1 L_lloop")
    A("  s_movk_i32 s47, 0x2000")
    A("  s_mov_b32 m0, s47")
    tile("v", "s46", "s48", mkwait(0, False))
    if p >= 8:
        A("  s_waitcnt vmcnt(24)")
        A("  s_barrier")
    ST(2)
    A("  s_waitcnt vmcnt(16)")
    A("  s_barrier")
    A("  s_waitcnt vmcnt(8)")
    A("  s_barrier")
    A("  s_waitcnt vmcnt(0)")
    ST(3)
    A("  s_barrier")
    if stamps:
        A("  s_branch L_end")
    else:
        A("  s_endpgm")
    A("L_cons:")
    Q, S, PC, KF, VF, ACC, PN = 12, 28, 36, 40, 72, 80, 112
    A("  s_sub_u32 s3, s3, 1")
    A("  v_lshlrev_b32 v91, 4, v0")
    A("  s_lshl_b32 s59, s3, 11")
    A("  s_add_u32 s59, s59, %d" % QL)
    A("  s_lshl_b32 s57, s22, 11")
    A("  s_movk_i32 s34, 2048")
    A("  s_mov_b32 s35, 0x20000")
    A("  s_mov_b32 m0, s59")
    A("  v_xor_b32 v1, v8, v9")
    A("  v_lshlrev_b32 v1, 4, v1")
    A("  v_lshl_add_u32 v1, v9, 8, v1")
    A("  v_xor_b32 v2, 64, v1")
    A("  v_xor_b32 v3, 0x80, v1")
    A("  v_xor_b32 v4, 0xc0, v1")
    A("  v_bfe_u32 v5, v0, 2, 4")
    A("  v_and_b32 v6, 7, v5")
    A("  v_lshlrev_b32 v6, 1, v6")
    A("  v_bfe_u32 v7, v0, 1, 1")
    A("  s_lshl_b32 s56, s3, 2")
    A("  v_add_u32 v7, s56, v7")
    A("  v_xor_b32 v6, v6, v7")
    A("  v_lshlrev_b32 v6, 4, v6")
    A("  v_lshl_add_u32 v5, v5, 8, v6")
    A("  v_and_b32 v6, 1, v0")
    A("  v_lshl_add_u32 v5, v6, 3, v5")
    A("  v_xor_b32 v6, 32, v5")
    A("  v_and_b32 v7, 7, v0")
    A("  v_lshlrev_b32 v7, 8, v7")
    A("  v_lshlrev_b32 v10, 4, v8")
    A("  v_lshlrev_b32 v11, 3, v8")
    A("  s_lshl_b32 s56, s3, 6")
    A("  v_add_u32 v11, s56, v11")
    A("  v_bfe_u32 v93, v0, 3, 1")
    A("  v_lshl_add_u32 v11, v93, 5, v11")
    A("  v_add_u32 v93, v11, v7")
    A("  v_add3_u32 v7, v7, v10, s59")
    A("  v_and_b32 v0, 0x70, v91")
    c = (128 ** -0.5) * math.log2(math.e)
    A("  s_mov_b32 s53, 0x%08x" % f2u(c))
    A("  s_mov_b32 s54, s53")
    A("  s_mov_b32 s55, s53")
    A("  v_mov_b32 v88, 0xff800000")
    A("  v_mov_b32 v89, 0")
    for i in range(4):
        A("  v_mov_b64 v[%d:%d], 0" % (ACC + 2 * i, ACC + 2 * i + 1))
    A("  v_mov_b32 v90, 0")
    A("  v_mov_b32 v92, 0")
    A("  v_mov_b32 v95, 1.0")
    A("  s_waitcnt lgkmcnt(0)")
    A("  s_add_u32 s32, s4, s57")
    A("  s_addc_u32 s33, s5, 0")
    A("  buffer_load_dwordx4 v91, s[32:35], 0 offen lds")
    A("  buffer_load_dwordx4 v91, s[32:35], 0 offen offset:1024 lds")
    A("  s_lshl_b32 s56, s22, 15")
    A("  s_add_u32 s48, s20, s56")
    A("  s_addc_u32 s49, s21, 0")
    A("  s_mov_b32 s50, 0x8000")
    A("  s_mov_b32 s51, 0x20000")
    A("  s_mov_b32 s36, s18")
    A("  s_mov_b32 s37, s19")
    A("  s_movk_i32 s38, 256")
    A("  s_mov_b32 s39, 0x20000")
    A("  s_lshl_b32 s56, s22, 11")
    A("  s_add_u32 s40, s16, s56")
    A("  s_addc_u32 s41, s17, 0")
    A("  s_movk_i32 s42, 2048")
    A("  s_mov_b32 s43, 0x20000")
    A("  s_lshl_b32 s57, s3, 13")
    A("  s_lshl_b32 s56, s23, 11")
    A("  s_add_u32 s60, s56, s57")
    A("  s_lshl_b32 s57, s23, 13")
    for k in range(1, 4):
        A("  s_add_u32 s56, s23, %d" % k)
        A("  s_and_b32 s56, s56, 3")
        A("  s_lshl_b32 s56, s56, 11")
        A("  s_add_u32 s%d, s56, s57" % (60 + k))
    A("  s_add_u32 s24, s20, 0x200000")
    A("  s_addc_u32 s25, s21, 0")
    A("  s_mov_b32 s26, 0x20000")
    A("  s_mov_b32 s27, 0x20000")
    A("  s_lshl_b32 s28, s22, 8")
    A("  s_lshl3_add_u32 s28, s3, s28")
    A("  s_add_u32 s28, s28, 0x10000")
    A("  s_getreg_b32 s30, hwreg(HW_REG_XCC_ID, 0, 4)")
    A("  s_cmp_eq_u32 s3, s23")
    A("  s_cselect_b32 s31, 0, 2")
    A("  s_cselect_b32 s29, %d, -1" % trit)
    A("  s_cselect_b32 s46, %d, -1" % (trit + 3))
    A("  s_xor_b32 s56, s3, 3")
    A("  s_or_b32 s56, s56, s2")
    A("  s_cselect_b32 s44, -1, %d" % it1)
    A("  s_cselect_b32 s45, -1, %d" % it2)
    A("  s_cbranch_scc1 L_notag0")
    A("  buffer_load_dword v94, v92, s[24:27], 0 offen sc1")
    A("L_notag0:")
    A("  s_barrier")
    ST(4)
    def kreads(regs, off):
        for u in range(2):
            for j in range(4):
                r = KF + 16 * u + 4 * j
                A("  ds_read_b128 v[%d:%d], v%d offset:%d" % (r, r + 3, regs[j], off + 4096 * u))
    kreads([1, 2, 3, 4], 0)
    A("  s_waitcnt vmcnt(0)")
    for j in range(4):
        A("  ds_read_b128 v[%d:%d], v7 offset:%d" % (Q + 4 * j, Q + 3 + 4 * j, 64 * j))
    ev = [it1, it2, trit, trit + 3, chkit, chkit + 4, xit, xit + 3, 31]
    A("  s_mov_b32 s32, 0x%x" % sum(1 << e for e in set(ev)))
    A("  s_mov_b32 s33, 1")
    A("  s_mov_b32 s47, 0")
    A("  s_mov_b32 s52, 0")
    A("  s_waitcnt lgkmcnt(0)")
    A("  s_branch L_qk")
    def rescale():
        if pk:
            for i in range(0, 8, 2):
                A("  v_pk_mul_f32 v[%d:%d], v[%d:%d], v[94:95] op_sel:[0,1] op_sel_hi:[1,1]" % (ACC + i, ACC + i + 1, ACC + i, ACC + i + 1))
        else:
            for i in range(8):
                A("  v_mul_f32 v%d, v%d, v95" % (ACC + i, ACC + i))
    def trreads(off, a0=104):
        A("  ds_read_b64_tr_b16 v[%d:%d], v%d offset:%d" % (VF, VF + 1, a0, off))
        A("  ds_read_b64_tr_b16 v[%d:%d], v%d offset:%d" % (VF + 2, VF + 3, a0, off + 4096))
        A("  ds_read_b64_tr_b16 v[%d:%d], v%d offset:%d" % (VF + 4, VF + 5, a0 + 1, off))
        A("  ds_read_b64_tr_b16 v[%d:%d], v%d offset:%d" % (VF + 6, VF + 7, a0 + 1, off + 4096))
    def pv(Pr, n):
        A("  s_waitcnt lgkmcnt(%d)" % (n + 2))
        A("  v_mfma_f32_16x16x32_bf16 v[%d:%d], v[%d:%d], v[%d:%d], v[%d:%d]" % (ACC, ACC + 3, VF, VF + 3, Pr, Pr + 3, ACC, ACC + 3))
        A("  s_waitcnt lgkmcnt(%d)" % n)
        A("  v_mfma_f32_16x16x32_bf16 v[%d:%d], v[%d:%d], v[%d:%d], v[%d:%d]" % (ACC + 4, ACC + 7, VF + 4, VF + 7, Pr, Pr + 3, ACC + 4, ACC + 7))
    A("L_cloop:")
    A("  s_barrier")
    trreads(0x2000)
    kreads([100, 101, 102, 103], 0)
    rescale()
    pv(PN, 8)
    A("L_qk:")
    for u in range(2):
        for j in range(4):
            d = S + 4 * u
            a = KF + 16 * u + 4 * j
            cc = "0" if j == 0 else "v[%d:%d]" % (d, d + 3)
            A("  s_waitcnt lgkmcnt(%d)" % (7 - 4 * u - j))
            A("  v_mfma_f32_16x16x32_bf16 v[%d:%d], v[%d:%d], v[%d:%d], %s" % (d, d + 3, a, a + 3, Q + 4 * j, Q + 3 + 4 * j, cc))
    A("  s_add_u32 s52, s52, 0x4000")
    A("  s_and_b32 s52, s52, 0xffff")
    for k in range(6):
        A("  v_add_u32 v%d, s52, v%d" % (100 + k, 1 + k))
    A("  v_mov_b32 v95, 1.0")
    A("  v_max3_f32 v8, v%d, v%d, v%d" % (S, S + 1, S + 2))
    A("  v_max3_f32 v8, v8, v%d, v%d" % (S + 3, S + 4))
    A("  v_max3_f32 v8, v8, v%d, v%d" % (S + 5, S + 6))
    A("  v_max_f32 v8, v8, v%d" % (S + 7))
    A("  v_mul_f32 v8, s53, v8")
    A("  v_cmp_gt_f32 vcc, v8, v88")
    A("  s_cbranch_vccz L_skip")
    A("  v_mov_b32 v9, v8")
    A("  s_nop 1")
    A("  v_permlane32_swap_b32 v8, v9")
    A("  v_max_f32 v8, v8, v9")
    A("  v_mov_b32 v9, v8")
    A("  s_nop 1")
    A("  v_permlane16_swap_b32 v8, v9")
    A("  v_max3_f32 v8, v8, v9, v88")
    A("  v_sub_f32 v95, v88, v8")
    A("  v_exp_f32 v95, v95")
    A("  v_mov_b32 v88, v8")
    A("  v_mul_f32 v89, v89, v95")
    A("L_skip:")
    if pk:
        for i in range(0, 8, 2):
            A("  v_pk_fma_f32 v[%d:%d], v[%d:%d], s[54:55], v[88:89] op_sel_hi:[1,1,0] neg_lo:[0,0,1] neg_hi:[0,0,1]" % (S + i, S + i + 1, S + i, S + i + 1))
    else:
        for i in range(8):
            A("  v_fma_f32 v%d, v%d, s53, -v88" % (S + i, S + i))
    for i in range(8):
        A("  v_exp_f32 v%d, v%d" % (S + i, S + i))
    for m in range(4):
        A("  v_cvt_pk_bf16_f32 v%d, v%d, v%d" % (PN + m, S + 2 * m, S + 1 + 2 * m))
    if pk:
        A("  v_pk_add_f32 v[%d:%d], v[%d:%d], v[%d:%d]" % (S, S + 1, S, S + 1, S + 2, S + 3))
        A("  v_pk_add_f32 v[%d:%d], v[%d:%d], v[%d:%d]" % (S + 4, S + 5, S + 4, S + 5, S + 6, S + 7))
        A("  v_pk_add_f32 v[%d:%d], v[%d:%d], v[%d:%d]" % (S, S + 1, S, S + 1, S + 4, S + 5))
        A("  v_add_f32 v89, v89, v%d" % S)
        A("  v_add_f32 v89, v89, v%d" % (S + 1))
    else:
        for i in range(8):
            A("  v_add_f32 v89, v89, v%d" % (S + i))
    A("  s_add_u32 s47, s47, 1")
    A("  s_bitcmp1_b64 s[32:33], s47")
    A("  s_cbranch_scc0 L_cloop")
    A("  s_cmp_eq_u32 s47, 32")
    A("  s_cbranch_scc1 L_final")
    A("  s_cmp_eq_u32 s47, 31")
    A("  s_cbranch_scc1 L_lastk")
    A("  s_cmp_eq_u32 s47, s44")
    A("  s_cbranch_scc0 L_not1")
    A("  s_waitcnt vmcnt(0)")
    A("  v_add_u32 v94, 1, v94")
    A("  v_max_u32 v94, 1, v94")
    A("  s_mov_b64 exec, 1")
    A("  buffer_store_dword v94, v92, s[24:27], 0 offen sc1")
    A("  s_mov_b64 exec, -1")
    A("L_not1:")
    A("  s_cmp_eq_u32 s47, s45")
    A("  s_cbranch_scc0 L_not2")
    A("  s_waitcnt vmcnt(0)")
    A("  s_mov_b64 exec, 1")
    if skew:
        A("  v_mov_b32 v9, s64")
        A("  buffer_store_dword v9, v92, s[36:39], 0 offen offset:4 sc1")
    A("  buffer_store_dword v94, v92, s[36:39], 0 offen sc1")
    A("  s_mov_b64 exec, -1")
    A("L_not2:")
    A("  s_cmp_eq_u32 s47, s29")
    A("  s_cbranch_scc0 L_notr1")
    A("  s_lshl_b32 s57, s22, 8")
    A("  s_add_u32 s4, s10, s57")
    A("  s_addc_u32 s5, s11, 0")
    A("  s_movk_i32 s6, 256")
    A("  s_mov_b32 s7, 0x20000")
    TK = [36, 96, 108, 116]
    for j in range(4):
        A("  buffer_load_dwordx4 v[%d:%d], v10, s[4:7], 0 offen offset:%d" % (TK[j], TK[j] + 3, 64 * j))
    A("  s_add_u32 s4, s12, s57")
    A("  s_addc_u32 s5, s13, 0")
    A("  s_lshr_b32 s57, s22, 2")
    A("  buffer_load_dwordx2 v[120:121], v11, s[4:7], 0 offen")
    A("  s_mov_b32 s4, s14")
    A("  s_mov_b32 s5, s15")
    A("  s_movk_i32 s6, 32")
    A("  s_lshl_b32 s57, s57, 1")
    A("  buffer_load_ushort v122, v92, s[4:7], s57 offen")
    if outpt == 1:
        A("  buffer_load_dwordx2 v[106:107], v93, s[40:43], 0 offen")
    A("L_notr1:")
    A("  s_cmp_eq_u32 s47, s46")
    A("  s_cbranch_scc0 L_notr2")
    A("  s_waitcnt vmcnt(0)")
    for j in range(4):
        cc = "0" if j == 0 else "v[124:127]"
        A("  v_mfma_f32_16x16x32_bf16 v[124:127], v[%d:%d], v[%d:%d], %s" % (TK[j], TK[j] + 3, Q + 4 * j, Q + 3 + 4 * j, cc))
    A("  v_lshlrev_b32 v122, 16, v122")
    A("  v_sub_f32 v122, 1.0, v122")
    A("  v_mul_f32 v122, 0x%08x, v122" % f2u(-1e9 * math.log2(math.e)))
    A("  v_and_b32 v119, 0xffff0000, v120")
    A("  v_lshlrev_b32 v118, 16, v120")
    A("  v_lshlrev_b32 v120, 16, v121")
    A("  v_and_b32 v121, 0xffff0000, v121")
    A("  s_nop 1")
    A("  v_fma_f32 v122, v124, s53, v122")
    A("L_notr2:")
    A("  s_cmp_eq_u32 s47, %d" % chkit)
    A("  s_cbranch_scc0 L_nochk")
    A("  buffer_load_dword v90, v92, s[36:39], 0 offen sc1")
    A("L_nochk:")
    A("  s_cmp_eq_u32 s47, %d" % (chkit + 4))
    A("  s_cbranch_scc0 L_tagdone")
    A("  s_mov_b32 s57, 0x200000")
    A("L_tagspin:")
    A("  s_waitcnt vmcnt(0)")
    A("  v_readfirstlane_b32 s56, v90")
    A("  s_cmp_lg_u32 s56, 0")
    A("  s_cbranch_scc1 L_tagok")
    A("  buffer_load_dword v90, v92, s[36:39], 0 offen sc1")
    A("  s_sub_u32 s57, s57, 1")
    A("  s_cbranch_scc0 L_tagspin")
    A("L_tagok:")
    if agree:
        A("  s_cmp_lg_u32 s31, 0")
        A("  s_cbranch_scc1 L_tagdone")
        A("  v_mov_b32 v8, v90")
        A("  v_mov_b32 v9, s30")
        A("  s_mov_b64 exec, 1")
        A("  buffer_store_dwordx2 v[8:9], v92, s[24:27], s28 offen sc1")
        A("  s_mov_b64 exec, -1")
    A("L_tagdone:")
    if agree:
        A("  s_cmp_eq_u32 s47, %d" % xit)
        A("  s_cbranch_scc0 L_nox1")
        A("  buffer_load_dwordx2 v[106:107], v92, s[24:27], s28 offen sc1")
        A("L_nox1:")
        A("  s_cmp_eq_u32 s47, %d" % (xit + 3))
        A("  s_cbranch_scc0 L_nox2")
        A("  s_waitcnt vmcnt(0)")
        A("  v_readfirstlane_b32 s57, v106")
        A("  v_readfirstlane_b32 s58, v107")
        A("  s_xor_b32 s57, s57, s56")
        A("  s_xor_b32 s58, s58, s30")
        A("  s_or_b32 s57, s57, s58")
        A("  s_cbranch_scc1 L_nox2")
        A("  s_lshr_b32 s31, s31, 1")
        if pretouch:
            A("  s_cbranch_scc0 L_nox2")
            A("  v_mov_b64 v[98:99], 0")
            A("  buffer_store_dwordx4 v[96:99], v91, s[48:51], s60 offen")
            A("  buffer_store_dwordx4 v[96:99], v0, s[48:51], s60 offen offset:1024")
        A("L_nox2:")
    A("  s_branch L_cloop")
    A("L_lastk:")
    A("  s_barrier")
    kreads([100, 101, 102, 103], 0)
    rescale()
    A("  v_mov_b64 v[%d:%d], v[%d:%d]" % (PC, PC + 1, PN, PN + 1))
    A("  v_mov_b64 v[%d:%d], v[%d:%d]" % (PC + 2, PC + 3, PN + 2, PN + 3))
    A("  v_mov_b64 v[116:117], v[104:105]")
    A("  s_branch L_qk")
    A("L_final:")
    A("  v_mov_b32 v9, v89")
    A("  v_mov_b32 v108, v88")
    A("  v_mov_b32 v99, v90")
    A("  v_permlane32_swap_b32 v89, v9")
    A("  v_add_f32 v89, v89, v9")
    A("  v_mov_b32 v9, v89")
    A("  v_mov_b32 v110, v90")
    A("  s_mov_b32 s57, 0x200000")
    A("  v_permlane16_swap_b32 v89, v9")
    A("  v_add_f32 v109, v89, v9")
    PF = ["sc1", "nt", "sc0 nt", "sc0", "sc1 nt"][pollfl]
    def spoll():
        for k in range(3):
            A("  buffer_load_dwordx4 v[%d:%d], v0, s[48:51], s%d offen offset:1024 %s" % (24 + 4 * k, 27 + 4 * k, 61 + k, PF))
    def opoll():
        for k in range(3):
            A("  buffer_load_dwordx4 v[%d:%d], v91, s[48:51], s%d offen %s" % (12 + 4 * k, 15 + 4 * k, 61 + k, PF))
    A("  s_cmp_eq_u32 s31, 1")
    A("  s_cbranch_scc0 L_fin2")
    A("  s_mov_b64 exec, 0xff")
    A("  buffer_store_dwordx4 v[108:111], v0, s[48:51], s60 offen offset:1024")
    A("  s_mov_b64 exec, -1")
    A("L_fin3:")
    A("  s_barrier")
    trreads(0x2000, 116)
    A("  s_mov_b32 s4, 0x07060501")
    A("  s_mov_b32 s5, 0x07060502")
    A("  s_mov_b32 s6, 0x07060503")
    pv(PC, 0)
    A("  s_mov_b32 vcc_lo, 0xff00ff00")
    A("  s_mov_b32 vcc_hi, 0xff00ff00")
    A("  s_cmp_eq_u32 s31, 1")
    A("  s_nop 4")
    rescale()
    ST(6)
    A("  s_barrier")
    trreads(0x2000)
    pv(PN, 0)
    A("  s_nop 7")
    for r, d in [(3, 111), (0, 96), (1, 97), (2, 98)]:
        A("  v_cndmask_b32 v%d, v%d, v%d, vcc" % (d, ACC + r, ACC + 4 + r))
    A("  s_cbranch_scc0 L_other")
    pf = ["", " sc0", " nt"][pubfl]
    def pack():
        for r in range(3):
            A("  v_perm_b32 v%d, v%d, v111, s%d" % (96 + r, 96 + r, 4 + r))
    pack()
    A("  buffer_store_dwordx4 v[96:99], v91, s[48:51], s60 offen%s" % pf)
    ST(9)
    A("  s_branch L_end" if stamps else "  s_endpgm")
    A("L_other:")
    A("  s_cmp_eq_u32 s31, 0")
    A("  s_cbranch_scc1 L_consume")
    pack()
    A("  buffer_store_dwordx4 v[96:99], v91, s[48:51], s60 offen sc1")
    ST(9)
    A("  s_branch L_end" if stamps else "  s_endpgm")
    A("L_fin2:")
    A("  s_cmp_eq_u32 s31, 0")
    A("  s_cbranch_scc1 L_fin4")
    A("  s_mov_b64 exec, 0xff")
    A("  buffer_store_dwordx4 v[108:111], v0, s[48:51], s60 offen offset:1024 sc1")
    A("  s_mov_b64 exec, -1")
    A("  s_branch L_fin3")
    A("L_fin4:")
    if outpt == 2:
        A("  buffer_load_dwordx2 v[106:107], v93, s[40:43], 0 offen")
    spoll()
    if spec == 2: opoll()
    A("  v_max_f32 v8, v108, v122")
    A("  v_sub_f32 v123, v108, v8")
    A("  v_sub_f32 v122, v122, v8")
    A("  v_exp_f32 v123, v123")
    A("  v_exp_f32 v122, v122")
    A("  v_mov_b32 v108, v8")
    A("  v_fma_f32 v109, v109, v123, v122")
    for r in range(4):
        A("  v_mul_f32 v%d, v122, v%d" % (118 + r, 118 + r))
    A("  s_branch L_fin3")
    A("L_consume:")
    for r, d in enumerate([96, 97, 98, 111]):
        A("  v_fma_f32 v%d, v%d, v123, v%d" % (96 + r, d, 118 + r))
    ST(9)
    A("  s_mov_b32 s4, 0x04000c0c")
    A("  s_mov_b32 s5, 0x0706000c")
    A("L_spoll:")
    A("  s_waitcnt vmcnt(0)")
    A("  v_xor_b32 v8, v26, v90")
    A("  v_xor_b32 v9, v30, v90")
    A("  v_xor_b32 v10, v34, v90")
    A("  v_or3_b32 v8, v8, v9, v10")
    A("  v_cmp_ne_u32 vcc, 0, v8")
    A("  s_cbranch_vccz L_sok")
    spoll()
    if both: opoll()
    A("  s_sub_u32 s57, s57, 1")
    A("  s_cbranch_scc0 L_spoll")
    A("  s_waitcnt vmcnt(0)")
    A("L_sok:")
    if useo:
        A("  v_xor_b32 v8, v15, v90")
        A("  v_xor_b32 v9, v19, v90")
        A("  v_xor_b32 v10, v23, v90")
        A("  v_or3_b32 v8, v8, v9, v10")
        A("  v_cmp_ne_u32 vcc, 0, v8")
        A("  s_cbranch_vccz L_noo")
    opoll()
    A("L_noo:")
    A("  v_max3_f32 v8, v108, v24, v28")
    A("  v_max_f32 v8, v8, v32")
    A("  v_sub_f32 v108, v108, v8")
    for k in range(3):
        A("  v_sub_f32 v%d, v%d, v8" % (24 + 4 * k, 24 + 4 * k))
    A("  v_exp_f32 v108, v108")
    for k in range(3):
        A("  v_exp_f32 v%d, v%d" % (24 + 4 * k, 24 + 4 * k))
    A("  v_mul_f32 v109, v108, v109")
    for k in range(3):
        A("  v_fmac_f32 v109, v%d, v%d" % (24 + 4 * k, 25 + 4 * k))
    A("  v_rcp_f32 v109, v109")
    A("  s_mov_b32 s57, 0x200000")
    A("  v_mul_f32 v108, v108, v109")
    for k in range(3):
        A("  v_mul_f32 v%d, v%d, v109" % (24 + 4 * k, 24 + 4 * k))
    A("  v_pk_mul_f32 v[96:97], v[96:97], v[108:109] op_sel_hi:[1,0]")
    A("  v_pk_mul_f32 v[98:99], v[98:99], v[108:109] op_sel_hi:[1,0]")
    A("L_opoll:")
    A("  s_waitcnt vmcnt(0)")
    A("  v_xor_b32 v8, v15, v90")
    A("  v_xor_b32 v9, v19, v90")
    A("  v_xor_b32 v10, v23, v90")
    A("  v_or3_b32 v8, v8, v9, v10")
    A("  v_cmp_ne_u32 vcc, 0, v8")
    A("  s_cbranch_vccz L_ook")
    opoll()
    A("  s_sub_u32 s57, s57, 1")
    A("  s_cbranch_scc0 L_opoll")
    A("  s_waitcnt vmcnt(0)")
    A("L_ook:")
    ST(10)
    for k in range(3):
        b = 12 + 4 * k
        A("  v_perm_b32 v%d, v%d, v%d, s4" % (b + 3, b + 2, b + 1))
    for k in range(3):
        b = 12 + 4 * k
        A("  v_pk_fma_f32 v[96:97], v[%d:%d], v[%d:%d], v[96:97] op_sel_hi:[1,0,1]" % (b, b + 1, 24 + 4 * k, 25 + 4 * k))
        A("  v_perm_b32 v%d, v%d, v%d, s5" % (b + 3, b + 3, b))
    for k in range(3):
        b = 12 + 4 * k
        A("  v_pk_fma_f32 v[98:99], v[%d:%d], v[%d:%d], v[98:99] op_sel_hi:[1,0,1]" % (b + 2, b + 3, 24 + 4 * k, 25 + 4 * k))
    A("  v_cvt_pk_bf16_f32 v96, v96, v97")
    A("  v_cvt_pk_bf16_f32 v97, v98, v99")
    A("  buffer_store_dwordx2 v[96:97], v93, s[40:43], 0 offen%s" % ["", " sc1", " nt", " sc0 sc1"][outsc])
    if stamps:
        A("L_end:")
        A("  s_waitcnt vmcnt(0)")
        ST(11)
        if da >= 0:
            if skew:
                if sel >= 0:
                    A("  s_and_b32 s56, s2, 7")
                    A("  s_cmp_lg_u32 s56, %d" % sel)
                    A("  s_cbranch_scc1 L_exit")
                A("  s_cmp_eq_u32 s72, 0")
                A("  s_cbranch_scc1 L_exit")
                A("  buffer_load_dword v9, v92, s[36:39], 0 offen offset:4 sc1")
                A("  s_waitcnt vmcnt(0)")
                A("  v_readfirstlane_b32 s57, v9")
                if skew == 1:
                    A("  s_sub_u32 s56, s%d, s57" % (64 + 2 * db))
                else:
                    A("  s_sub_u32 s56, s57, s%d" % (64 + 2 * db))
                A("  s_max_i32 s56, s56, 0")
                A("  s_add_u32 s%d, s%d, s56" % (64 + 2 * 8, 64 + 2 * da))
                db = 8
            A("  s_cmp_eq_u32 s%d, 0" % (64 + 2 * da))
            A("  s_cbranch_scc1 L_exit")
            A("  s_cmp_eq_u32 s%d, 0" % (64 + 2 * db))
            A("  s_cbranch_scc1 L_exit")
            A("  s_sub_u32 s56, s%d, s%d" % (64 + 2 * db, 64 + 2 * da))
            A("  s_min_u32 s56, s56, 5000")
            A("  s_mul_i32 s56, s56, %d" % dk)
            A("L_dspin:")
            A("  s_memrealtime s[58:59]")
            A("  s_waitcnt lgkmcnt(0)")
            A("  s_sub_u32 s57, s58, s86")
            A("  s_cmp_lt_u32 s57, s56")
            A("  s_cbranch_scc1 L_dspin")
        else:
            A("  s_add_u32 s24, s20, 0x8000000")
            A("  s_addc_u32 s25, s21, 0")
            A("  s_mov_b32 s26, 0x100000")
            A("  s_mov_b32 s27, 0x20000")
            A("  s_getreg_b32 s58, hwreg(HW_REG_HW_ID)")
            A("  s_mul_i32 s56, s2, %d" % W)
            A("  v_readfirstlane_b32 s57, v128")
            A("  s_add_u32 s56, s56, s57")
            A("  s_lshl_b32 s56, s56, 7")
            A("  s_mov_b64 exec, 1")
            A("  v_mov_b32 v1, 0")
            for i in range(12):
                A("  v_mov_b32 v2, s%d" % (64 + 2 * i))
                A("  v_mov_b32 v3, s%d" % (65 + 2 * i))
                A("  buffer_store_dwordx2 v[2:3], v1, s[24:27], s56 offen offset:%d" % (8 * i))
                A("  s_nop 1")
            A("  s_getreg_b32 s57, hwreg(HW_REG_XCC_ID)")
            A("  v_mov_b32 v2, s57")
            A("  v_mov_b32 v3, s58")
            A("  buffer_store_dwordx2 v[2:3], v1, s[24:27], s56 offen offset:120")
    A("L_exit:")
    A("  s_endpgm")
    footer(L, 136 if stamps else vg, 96 if stamps else 64)
    s = "\n".join(L) + "\n"
    if stamps:
        s = s.replace("  v_and_b32 v0, 63, v0\n", "  v_and_b32 v0, 63, v0\n  v_mov_b32 v128, v1\n", 1)
    return s

if __name__ == "__main__":
    for a in sys.argv[1:]:
        name, _, kv = a.partition(":")
        kw = {}
        for x in kv.split(","):
            if not x: continue
            k, v = x.split("=")
            kw[k] = int(v)
        open(name, "w").write(gen(**kw))
```

```python
import sys, math, struct
from gen2 import header, footer, f2u, NAME

def gen(nt=1, stamps=0, N=19, it1=3, it2=6, trit=7, chkit=10, xit=19, lprio=3, light=0,
        da=-1, db=-1, dk=10, skew=0, bst=0, kx=0):
    L = []; A = L.append
    NT = " nt" if nt else ""
    W = 5
    def ST(i):
        if stamps and light and i == 4:
            A("  s_mov_b32 s72, 1")
        if stamps and (not light or i == 11):
            A("  s_memrealtime s[%d:%d]" % (64 + 2 * i, 65 + 2 * i))
            A("  s_waitcnt lgkmcnt(0)")
    SL = 65536
    QL = SL + 24576
    MT = SL + 32768
    header(L, "; @launch grid=(256,1,1) block=(320,1,1) lds=%d" % (MT + 256))
    A("  s_load_dwordx16 s[4:19], s[0:1], 0")
    A("  s_load_dwordx2 s[20:21], s[0:1], 64")
    A("  s_cmp_ge_u32 s2, 256")
    A("  s_cbranch_scc1 L_exit")
    if stamps:
        for i in range(1, 12):
            A("  s_mov_b64 s[%d:%d], 0" % (64 + 2 * i, 65 + 2 * i))
        A("  s_memrealtime s[64:65]")
    A("  v_lshrrev_b32 v1, 6, v0")
    A("  v_and_b32 v0, 63, v0")
    A("  v_readfirstlane_b32 s3, v1")
    A("  s_and_b32 s22, s2, 7")
    A("  s_lshr_b32 s23, s2, 5")
    A("  s_lshl3_add_u32 s22, s22, s23")
    A("  s_bfe_u32 s23, s2, 0x20003")
    A("  v_lshrrev_b32 v8, 4, v0")
    A("  v_and_b32 v9, 15, v0")
    A("  s_cmp_lg_u32 s3, 0")
    A("  s_cbranch_scc1 L_cons")
    if lprio:
        A("  s_setprio %d" % lprio)
    A("  v_xor_b32 v1, v9, v8")
    A("  v_lshlrev_b32 v1, 4, v1")
    A("  v_lshl_add_u32 v1, v8, 8, v1")
    A("  v_xor_b32 v2, 64, v1")
    A("  v_xor_b32 v3, 0x80, v1")
    A("  v_xor_b32 v4, 0xc0, v1")
    A("  s_lshl_b32 s56, s22, 20")
    A("  s_lshl_b32 s46, s23, 18")
    A("  s_mov_b32 s26, 0x100000")
    A("  s_mov_b32 s27, 0x20000")
    A("  s_mov_b32 m0, 0")
    A("  v_lshlrev_b32 v5, 1, v8")
    A("  v_xor_b32 v5, v9, v5")
    A("  v_lshlrev_b32 v5, 4, v5")
    A("  v_lshl_add_u32 v5, v8, 8, v5")
    A("  v_xor_b32 v6, 0x80, v5")
    A("  s_mov_b32 s44, 0")
    A("  s_waitcnt lgkmcnt(0)")
    ST(1)
    A("  s_add_u32 s24, s6, s56")
    A("  s_addc_u32 s25, s7, 0")
    p = (N - 1) % 16
    assert 17 <= N <= 32
    def group(kind):
        for u in range(4):
            for i in range(4):
                A("  s_waitcnt vmcnt(%d)" % (N - 1))
                if 4 * u + i == p:
                    if kind == "k":
                        A("  s_cmp_lt_u32 s44, 2")
                        A("  s_cbranch_scc1 L_nobar")
                    if bst:
                        A("  s_memtime s[88:89]")
                        A("  s_waitcnt lgkmcnt(0)")
                    A("  s_barrier")
                    if bst:
                        A("  s_memtime s[90:91]")
                        A("  s_waitcnt lgkmcnt(0)")
                        A("  s_sub_u32 s88, s90, s88")
                        A("  s_cmp_lt_u32 s44, 6")
                        A("  s_cselect_b32 s89, s88, 0")
                        A("  s_add_u32 s74, s74, s89")
                        A("  s_add_u32 s76, s76, s88")
                        A("  s_max_u32 s78, s78, s88")
                    if kind == "k":
                        A("L_nobar:")
                A("  buffer_load_dwordx4 v%d, s[24:27], s46 offen offset:%d%s lds" % ((1 + i) if kind == "k" else (5 + (i & 1)), 1024 * i, NT))
            A("  s_add_u32 s46, s46, 0x1000")
            A("  s_add_u32 m0, m0, 0x1000")
        A("  s_and_b32 m0, m0, 0xffff")
        A("  s_add_u32 s44, s44, 1")
    A("L_lk:")
    group("k")
    A("  s_cmp_lt_u32 s44, 16")
    A("  s_cbranch_scc1 L_lk")
    A("  s_add_u32 s24, s8, s56")
    A("  s_addc_u32 s25, s9, 0")
    A("  s_lshl_b32 s46, s23, 18")
    A("L_lv:")
    group("v")
    A("  s_cmp_lt_u32 s44, 32")
    A("  s_cbranch_scc1 L_lv")
    ST(2)
    A("  s_waitcnt vmcnt(16)")
    A("  s_barrier")
    A("  s_waitcnt vmcnt(8)")
    A("  s_barrier")
    A("  s_waitcnt vmcnt(0)")
    ST(3)
    A("  s_barrier")
    A("  s_branch L_end" if stamps else "  s_endpgm")
    A("L_cons:")
    Q, S, PA, KF, SA, SB, VB, VA, ACC, PB = 12, 28, 36, 40, 40, 48, 64, 72, 80, 112
    A("  s_sub_u32 s3, s3, 1")
    A("  v_lshlrev_b32 v91, 4, v0")
    A("  s_lshl_b32 s59, s3, 11")
    A("  s_add_u32 s59, s59, %d" % QL)
    A("  s_lshl_b32 s57, s22, 11")
    A("  s_movk_i32 s34, 2048")
    A("  s_mov_b32 s35, 0x20000")
    A("  s_mov_b32 m0, s59")
    A("  v_xor_b32 v1, v8, v9")
    A("  v_lshlrev_b32 v1, 4, v1")
    A("  v_lshl_add_u32 v1, v9, 8, v1")
    A("  s_lshl_b32 s56, s3, 12")
    A("  v_add_u32 v1, s56, v1")
    A("  v_xor_b32 v2, 64, v1")
    A("  v_xor_b32 v3, 0x80, v1")
    A("  v_xor_b32 v4, 0xc0, v1")
    A("  v_bfe_u32 v5, v0, 2, 4")
    A("  v_and_b32 v6, 7, v5")
    A("  v_lshlrev_b32 v6, 1, v6")
    A("  v_bfe_u32 v7, v0, 1, 1")
    A("  s_lshl_b32 s56, s3, 2")
    A("  v_add_u32 v7, s56, v7")
    A("  v_xor_b32 v6, v6, v7")
    A("  v_lshlrev_b32 v6, 4, v6")
    A("  v_lshl_add_u32 v5, v5, 8, v6")
    A("  v_and_b32 v6, 1, v0")
    A("  v_lshl_add_u32 v5, v6, 3, v5")
    A("  v_xor_b32 v6, 32, v5")
    A("  v_and_b32 v7, 7, v0")
    A("  v_lshlrev_b32 v7, 8, v7")
    A("  v_lshlrev_b32 v10, 4, v8")
    A("  v_lshlrev_b32 v11, 3, v8")
    A("  s_lshl_b32 s56, s3, 6")
    A("  v_add_u32 v11, s56, v11")
    A("  v_bfe_u32 v93, v0, 3, 1")
    A("  v_lshl_add_u32 v11, v93, 5, v11")
    A("  v_add_u32 v93, v11, v7")
    A("  v_add3_u32 v7, v7, v10, s59")
    A("  v_and_b32 v0, 0x70, v91")
    A("  v_lshl_add_u32 v106, v8, 7, v0")
    A("  v_add_u32 v106, %d, v106" % SL)
    A("  s_lshl_b32 s56, s3, 9")
    A("  v_add_u32 v107, s56, v106")
    A("  v_lshlrev_b32 v95, 4, v9")
    A("  v_add_u32 v95, %d, v95" % MT)
    c = (128 ** -0.5) * math.log2(math.e)
    A("  s_mov_b32 s53, 0x%08x" % f2u(c))
    A("  s_mov_b32 s54, s53")
    A("  s_mov_b32 s55, s53")
    A("  v_mov_b32 v88, 0xff800000")
    A("  v_mov_b32 v89, 0")
    for i in range(4):
        A("  v_mov_b64 v[%d:%d], 0" % (ACC + 2 * i, ACC + 2 * i + 1))
    A("  v_mov_b32 v90, 0")
    A("  v_mov_b32 v92, 0")
    A("  s_waitcnt lgkmcnt(0)")
    A("  s_add_u32 s32, s4, s57")
    A("  s_addc_u32 s33, s5, 0")
    A("  buffer_load_dwordx4 v91, s[32:35], 0 offen lds")
    A("  buffer_load_dwordx4 v91, s[32:35], 0 offen offset:1024 lds")
    A("  s_lshl_b32 s56, s22, 15")
    A("  s_add_u32 s48, s20, s56")
    A("  s_addc_u32 s49, s21, 0")
    A("  s_mov_b32 s50, 0x8000")
    A("  s_mov_b32 s51, 0x20000")
    A("  s_mov_b32 s36, s18")
    A("  s_mov_b32 s37, s19")
    A("  s_movk_i32 s38, 256")
    A("  s_mov_b32 s39, 0x20000")
    A("  s_lshl_b32 s56, s22, 11")
    A("  s_add_u32 s40, s16, s56")
    A("  s_addc_u32 s41, s17, 0")
    A("  s_movk_i32 s42, 2048")
    A("  s_mov_b32 s43, 0x20000")
    A("  s_lshl_b32 s57, s3, 13")
    A("  s_lshl_b32 s56, s23, 11")
    A("  s_add_u32 s60, s56, s57")
    A("  s_lshl_b32 s57, s23, 13")
    for k in range(1, 4):
        A("  s_add_u32 s56, s23, %d" % k)
        A("  s_and_b32 s56, s56, 3")
        A("  s_lshl_b32 s56, s56, 11")
        A("  s_add_u32 s%d, s56, s57" % (60 + k))
    A("  s_add_u32 s24, s20, 0x200000")
    A("  s_addc_u32 s25, s21, 0")
    A("  s_mov_b32 s26, 0x20000")
    A("  s_mov_b32 s27, 0x20000")
    A("  s_lshl_b32 s28, s22, 8")
    A("  s_lshl3_add_u32 s28, s3, s28")
    A("  s_add_u32 s28, s28, 0x10000")
    A("  s_getreg_b32 s30, hwreg(HW_REG_XCC_ID, 0, 4)")
    A("  s_cmp_eq_u32 s3, s23")
    A("  s_cselect_b32 s31, 0, 2")
    A("  s_cselect_b32 s29, %d, -1" % trit)
    A("  s_cselect_b32 s46, %d, -1" % (trit + 3))
    A("  s_xor_b32 s56, s3, 3")
    A("  s_or_b32 s56, s56, s2")
    A("  s_cselect_b32 s44, -1, %d" % it1)
    A("  s_cselect_b32 s45, -1, %d" % it2)
    A("  s_cbranch_scc1 L_notag0")
    A("  buffer_load_dword v94, v92, s[24:27], 0 offen sc1")
    A("L_notag0:")
    ev = [it1, it2, trit, trit + 3, chkit, chkit + 4, 16, xit, xit + 3, 31]
    assert trit + 3 < 16 and it2 < chkit and chkit + 4 < xit
    A("  s_mov_b32 s58, 0x%x" % sum(1 << e for e in set(ev)))
    A("  s_mov_b32 s47, 0")
    A("  s_mov_b32 s52, 0")
    A("  s_mov_b32 s8, 0x00ff00ff")
    A("  s_mov_b32 s9, 0x00ff00ff")
    A("  s_barrier")
    ST(4)
    for j in range(4):
        A("  ds_read_b128 v[%d:%d], v%d" % (KF + 4 * j, KF + 3 + 4 * j, 1 + j))
    A("  s_waitcnt vmcnt(0)")
    for j in range(4):
        A("  ds_read_b128 v[%d:%d], v7 offset:%d" % (Q + 4 * j, Q + 3 + 4 * j, 64 * j))
    A("  s_waitcnt lgkmcnt(0)")
    A("  s_branch L_kq")
    A("L_kloop:")
    A("  s_barrier")
    for j in range(4):
        A("  ds_read_b128 v[%d:%d], v%d" % (KF + 4 * j, KF + 3 + 4 * j, 100 + j))
    A("L_kq:")
    for j in range(4):
        cc = "0" if j == 0 else "v[%d:%d]" % (S, S + 3)
        A("  s_waitcnt lgkmcnt(%d)" % (3 - j))
        A("  v_mfma_f32_16x16x32_bf16 v[%d:%d], v[%d:%d], v[%d:%d], %s" % (S, S + 3, KF + 4 * j, KF + 3 + 4 * j, Q + 4 * j, Q + 3 + 4 * j, cc))
    A("  s_add_u32 s52, s52, 0x4000")
    A("  s_and_b32 s52, s52, 0xffff")
    A("  s_add_u32 s47, s47, 1")
    for k in range(4):
        A("  v_add_u32 v%d, s52, v%d" % (100 + k, 1 + k))
    A("  s_mov_b64 exec, s[8:9]")
    A("  ds_write_b128 v107, v[%d:%d]" % (S, S + 3))
    A("  s_mov_b64 exec, -1")
    A("  v_max3_f32 v88, v88, v%d, v%d" % (S, S + 1))
    A("  v_max3_f32 v88, v88, v%d, v%d" % (S + 2, S + 3))
    A("  v_add_u32 v107, 0x800, v107")
    A("  s_bitcmp1_b32 s58, s47")
    A("  s_cbranch_scc0 L_kloop")
    A("  s_cmp_eq_u32 s47, 16")
    A("  s_cbranch_scc0 L_events")
    A("  v_mul_f32 v88, s53, v88")
    A("  s_lshl_b32 s56, s3, 2")
    A("  v_mov_b32 v9, v88")
    A("  v_add_u32 v8, s56, v95")
    A("  v_mov_b32 v104, v5")
    A("  v_permlane32_swap_b32 v88, v9")
    A("  v_max_f32 v88, v88, v9")
    A("  v_mov_b32 v9, v88")
    A("  v_mov_b32 v105, v6")
    A("  s_nop 0")
    A("  v_permlane16_swap_b32 v88, v9")
    A("  v_max_f32 v88, v88, v9")
    A("  ds_write_b32 v8, v88")
    A("  s_waitcnt lgkmcnt(0)")
    A("  s_barrier")
    A("  ds_read_b128 v[%d:%d], v95" % (S, S + 3))
    def sreads():
        for k in range(4):
            A("  ds_read_b128 v[%d:%d], v106 offset:%d" % (SA + 4 * k, SA + 3 + 4 * k, 512 * k))
        A("  v_add_u32 v106, 0x800, v106")
    def pcomp(Sx, Pd):
        for i in range(0, 8, 2):
            A("  v_pk_fma_f32 v[%d:%d], v[%d:%d], s[54:55], v[88:89] op_sel_hi:[1,1,0] neg_lo:[0,0,1] neg_hi:[0,0,1]" % (Sx + i, Sx + i + 1, Sx + i, Sx + i + 1))
        for i in range(8):
            A("  v_exp_f32 v%d, v%d" % (Sx + i, Sx + i))
        for m in range(4):
            A("  v_cvt_pk_bf16_f32 v%d, v%d, v%d" % (Pd + m, Sx + 2 * m, Sx + 1 + 2 * m))
    def lsum():
        A("  v_pk_add_f32 v[%d:%d], v[%d:%d], v[%d:%d]" % (SA, SA + 1, SA, SA + 1, SA + 2, SA + 3))
        A("  v_pk_add_f32 v[%d:%d], v[%d:%d], v[%d:%d]" % (SA + 4, SA + 5, SA + 4, SA + 5, SA + 6, SA + 7))
        A("  v_pk_add_f32 v[%d:%d], v[%d:%d], v[%d:%d]" % (SB, SB + 1, SB, SB + 1, SB + 2, SB + 3))
        A("  v_pk_add_f32 v[%d:%d], v[%d:%d], v[%d:%d]" % (SB + 4, SB + 5, SB + 4, SB + 5, SB + 6, SB + 7))
        A("  v_pk_add_f32 v[%d:%d], v[%d:%d], v[%d:%d]" % (SA, SA + 1, SA, SA + 1, SA + 4, SA + 5))
        A("  v_pk_add_f32 v[%d:%d], v[%d:%d], v[%d:%d]" % (SB, SB + 1, SB, SB + 1, SB + 4, SB + 5))
        A("  v_pk_add_f32 v[%d:%d], v[%d:%d], v[%d:%d]" % (SA, SA + 1, SA, SA + 1, SB, SB + 1))
        A("  v_add_f32 v89, v89, v%d" % SA)
        A("  v_add_f32 v89, v89, v%d" % (SA + 1))
    sreads()
    A("  s_waitcnt lgkmcnt(4)")
    A("  v_max3_f32 v88, v%d, v%d, v%d" % (S, S + 1, S + 2))
    A("  v_max_f32 v88, v88, v%d" % (S + 3))
    A("  s_waitcnt lgkmcnt(2)")
    pcomp(SA, PA)
    A("  s_waitcnt lgkmcnt(0)")
    pcomp(SB, PB)
    lsum()
    A("  s_branch L_vbody")
    def trreads(V, off):
        A("  ds_read_b64_tr_b16 v[%d:%d], v104 offset:%d" % (V, V + 1, off))
        A("  ds_read_b64_tr_b16 v[%d:%d], v104 offset:%d" % (V + 2, V + 3, off + 4096))
        A("  ds_read_b64_tr_b16 v[%d:%d], v105 offset:%d" % (V + 4, V + 5, off))
        A("  ds_read_b64_tr_b16 v[%d:%d], v105 offset:%d" % (V + 6, V + 7, off + 4096))
    def pv(V, Pr, n):
        A("  s_waitcnt lgkmcnt(%d)" % (n + 2))
        A("  v_mfma_f32_16x16x32_bf16 v[%d:%d], v[%d:%d], v[%d:%d], v[%d:%d]" % (ACC, ACC + 3, V, V + 3, Pr, Pr + 3, ACC, ACC + 3))
        A("  s_waitcnt lgkmcnt(%d)" % n)
        A("  v_mfma_f32_16x16x32_bf16 v[%d:%d], v[%d:%d], v[%d:%d], v[%d:%d]" % (ACC + 4, ACC + 7, V + 4, V + 7, Pr, Pr + 3, ACC + 4, ACC + 7))
    A("L_vloop:")
    A("  s_barrier")
    A("L_vbody:")
    trreads(VA, 0)
    trreads(VB, 0x2000)
    sreads()
    A("  s_add_u32 s52, s52, 0x4000")
    A("  s_and_b32 s52, s52, 0xffff")
    A("  s_add_u32 s47, s47, 1")
    A("  v_add_u32 v104, s52, v5")
    A("  v_add_u32 v105, s52, v6")
    pv(VA, PA, 8)
    pv(VB, PB, 4)
    A("  s_waitcnt lgkmcnt(2)")
    pcomp(SA, PA)
    A("  s_waitcnt lgkmcnt(0)")
    pcomp(SB, PB)
    lsum()
    A("  s_bitcmp1_b32 s58, s47")
    A("  s_cbranch_scc0 L_vloop")
    A("  s_cmp_eq_u32 s47, 31")
    A("  s_cbranch_scc1 L_final")
    A("L_events:")
    A("  s_cmp_eq_u32 s47, s44")
    A("  s_cbranch_scc0 L_not1")
    A("  s_waitcnt vmcnt(0)")
    A("  v_add_u32 v94, 1, v94")
    A("  v_max_u32 v94, 1, v94")
    A("  s_mov_b64 exec, 1")
    A("  buffer_store_dword v94, v92, s[24:27], 0 offen sc1")
    A("  s_mov_b64 exec, -1")
    A("L_not1:")
    A("  s_cmp_eq_u32 s47, s45")
    A("  s_cbranch_scc0 L_not2")
    A("  s_waitcnt vmcnt(0)")
    A("  s_mov_b64 exec, 1")
    if skew:
        A("  v_mov_b32 v9, s64")
        A("  buffer_store_dword v9, v92, s[36:39], 0 offen offset:4 sc1")
    A("  buffer_store_dword v94, v92, s[36:39], 0 offen sc1")
    A("  s_mov_b64 exec, -1")
    A("L_not2:")
    A("  s_cmp_eq_u32 s47, s29")
    A("  s_cbranch_scc0 L_notr1")
    A("  s_lshl_b32 s57, s22, 8")
    A("  s_add_u32 s4, s10, s57")
    A("  s_addc_u32 s5, s11, 0")
    A("  s_movk_i32 s6, 256")
    A("  s_mov_b32 s7, 0x20000")
    TK = [56, 60, 64, 68]
    for j in range(4):
        A("  buffer_load_dwordx4 v[%d:%d], v10, s[4:7], 0 offen offset:%d" % (TK[j], TK[j] + 3, 64 * j))
    A("  s_add_u32 s4, s12, s57")
    A("  s_addc_u32 s5, s13, 0")
    A("  s_lshr_b32 s57, s22, 2")
    A("  buffer_load_dwordx2 v[120:121], v11, s[4:7], 0 offen")
    A("  s_mov_b32 s4, s14")
    A("  s_mov_b32 s5, s15")
    A("  s_movk_i32 s6, 32")
    A("  s_lshl_b32 s57, s57, 1")
    A("  buffer_load_ushort v122, v92, s[4:7], s57 offen")
    A("L_notr1:")
    A("  s_cmp_eq_u32 s47, s46")
    A("  s_cbranch_scc0 L_notr2")
    A("  s_waitcnt vmcnt(0)")
    for j in range(4):
        cc = "0" if j == 0 else "v[124:127]"
        A("  v_mfma_f32_16x16x32_bf16 v[124:127], v[%d:%d], v[%d:%d], %s" % (TK[j], TK[j] + 3, Q + 4 * j, Q + 3 + 4 * j, cc))
    A("  v_lshlrev_b32 v122, 16, v122")
    A("  v_sub_f32 v122, 1.0, v122")
    A("  v_mul_f32 v122, 0x%08x, v122" % f2u(-1e9 * math.log2(math.e)))
    A("  v_and_b32 v119, 0xffff0000, v120")
    A("  v_lshlrev_b32 v118, 16, v120")
    A("  v_lshlrev_b32 v120, 16, v121")
    A("  v_and_b32 v121, 0xffff0000, v121")
    A("  s_nop 1")
    A("  v_fma_f32 v122, v124, s53, v122")
    A("L_notr2:")
    A("  s_cmp_eq_u32 s47, %d" % chkit)
    A("  s_cbranch_scc0 L_nochk")
    A("  buffer_load_dword v90, v92, s[36:39], 0 offen sc1")
    A("L_nochk:")
    A("  s_cmp_eq_u32 s47, %d" % (chkit + 4))
    A("  s_cbranch_scc0 L_tagdone")
    A("  s_mov_b32 s57, 0x200000")
    A("L_tagspin:")
    A("  s_waitcnt vmcnt(0)")
    A("  v_readfirstlane_b32 s59, v90")
    A("  s_cmp_lg_u32 s59, 0")
    A("  s_cbranch_scc1 L_tagok")
    A("  buffer_load_dword v90, v92, s[36:39], 0 offen sc1")
    A("  s_sub_u32 s57, s57, 1")
    A("  s_cbranch_scc0 L_tagspin")
    A("L_tagok:")
    A("  s_cmp_lg_u32 s31, 0")
    A("  s_cbranch_scc1 L_tagdone")
    A("  v_mov_b32 v8, v90")
    A("  v_mov_b32 v9, s30")
    A("  s_mov_b64 exec, 1")
    A("  buffer_store_dwordx2 v[8:9], v92, s[24:27], s28 offen sc1")
    A("  s_mov_b64 exec, -1")
    A("L_tagdone:")
    A("  s_cmp_eq_u32 s47, %d" % xit)
    A("  s_cbranch_scc0 L_nox1")
    A("  buffer_load_dwordx2 v[100:101], v92, s[24:27], s28 offen sc1")
    A("L_nox1:")
    A("  s_cmp_eq_u32 s47, %d" % (xit + 3))
    A("  s_cbranch_scc0 L_nox2")
    A("  s_waitcnt vmcnt(0)")
    A("  v_readfirstlane_b32 s57, v100")
    A("  v_readfirstlane_b32 s56, v101")
    A("  s_xor_b32 s57, s57, s59")
    A("  s_xor_b32 s56, s56, s30")
    A("  s_or_b32 s57, s57, s56")
    A("  s_cbranch_scc1 L_nox2")
    A("  s_lshr_b32 s31, s31, 1")
    A("L_nox2:")
    A("  s_cmp_lt_u32 s47, 16")
    A("  s_cbranch_scc1 L_kloop")
    A("  s_branch L_vloop")
    A("L_final:")
    A("  v_mov_b32 v9, v89")
    A("  v_mov_b32 v108, v88")
    A("  v_mov_b32 v99, v90")
    A("  v_permlane32_swap_b32 v89, v9")
    A("  v_add_f32 v89, v89, v9")
    A("  v_mov_b32 v9, v89")
    A("  v_mov_b32 v110, v90")
    A("  s_mov_b32 s57, 0x200000")
    A("  v_permlane16_swap_b32 v89, v9")
    A("  v_add_f32 v109, v89, v9")
    def spoll():
        for k in range(3):
            A("  buffer_load_dwordx4 v[%d:%d], v0, s[48:51], s%d offen offset:1024 sc1" % (24 + 4 * k, 27 + 4 * k, 61 + k))
    def opoll():
        for k in range(3):
            A("  buffer_load_dwordx4 v[%d:%d], v91, s[48:51], s%d offen sc1" % (12 + 4 * k, 15 + 4 * k, 61 + k))
    def chk(a, b, c_, ok):
        A("  v_xor_b32 v8, v%d, v90" % a)
        A("  v_xor_b32 v9, v%d, v90" % b)
        A("  v_xor_b32 v10, v%d, v90" % c_)
        A("  v_or3_b32 v8, v8, v9, v10")
        A("  v_cmp_ne_u32 vcc, 0, v8")
        A("  s_cbranch_vccz %s" % ok)
    A("  s_cmp_eq_u32 s31, 1")
    A("  s_cbranch_scc0 L_fin2")
    A("  s_mov_b64 exec, 0xff")
    A("  buffer_store_dwordx4 v[108:111], v0, s[48:51], s60 offen offset:1024")
    A("  s_mov_b64 exec, -1")
    A("L_fin3:")
    A("  s_barrier")
    trreads(VA, 0)
    A("  s_mov_b32 s4, 0x07060501")
    A("  s_mov_b32 s5, 0x07060502")
    A("  s_mov_b32 s6, 0x07060503")
    A("  s_mov_b32 vcc_lo, 0xff00ff00")
    A("  s_mov_b32 vcc_hi, 0xff00ff00")
    A("  s_cmp_eq_u32 s31, 1")
    pv(VA, PA, 0)
    ST(6)
    A("  s_barrier")
    trreads(VB, 0x2000)
    pv(VB, PB, 0)
    A("  s_nop 7")
    for r, d in [(3, 111), (0, 96), (1, 97), (2, 98)]:
        A("  v_cndmask_b32 v%d, v%d, v%d, vcc" % (d, ACC + r, ACC + 4 + r))
    A("  s_cbranch_scc0 L_other")
    def pack():
        for r in range(3):
            A("  v_perm_b32 v%d, v%d, v111, s%d" % (96 + r, 96 + r, 4 + r))
    pack()
    A("  buffer_store_dwordx4 v[96:99], v91, s[48:51], s60 offen")
    ST(9)
    A("  s_branch L_end" if stamps else "  s_endpgm")
    A("L_other:")
    A("  s_cmp_eq_u32 s31, 0")
    A("  s_cbranch_scc1 L_consume")
    pack()
    A("  buffer_store_dwordx4 v[96:99], v91, s[48:51], s60 offen sc1")
    ST(9)
    A("  s_branch L_end" if stamps else "  s_endpgm")
    A("L_fin2:")
    A("  s_cmp_eq_u32 s31, 0")
    A("  s_cbranch_scc1 L_fin4")
    A("  s_mov_b64 exec, 0xff")
    A("  buffer_store_dwordx4 v[108:111], v0, s[48:51], s60 offen offset:1024 sc1")
    A("  s_mov_b64 exec, -1")
    A("  s_branch L_fin3")
    A("L_fin4:")
    spoll()
    opoll()
    A("  v_max_f32 v8, v108, v122")
    A("  v_sub_f32 v123, v108, v8")
    A("  v_sub_f32 v122, v122, v8")
    A("  v_exp_f32 v123, v123")
    A("  v_exp_f32 v122, v122")
    A("  v_mov_b32 v108, v8")
    A("  v_fma_f32 v109, v109, v123, v122")
    for r in range(4):
        A("  v_mul_f32 v%d, v122, v%d" % (118 + r, 118 + r))
    A("  s_branch L_fin3")
    A("L_consume:")
    for r, d in enumerate([96, 97, 98, 111]):
        A("  v_fma_f32 v%d, v%d, v123, v%d" % (96 + r, d, 118 + r))
    ST(9)
    A("  s_mov_b32 s4, 0x04000c0c")
    A("  s_mov_b32 s5, 0x0706000c")
    A("L_spoll:")
    A("  s_waitcnt vmcnt(0)")
    chk(26, 30, 34, "L_sok")
    spoll()
    A("  s_sub_u32 s57, s57, 1")
    A("  s_cbranch_scc0 L_spoll")
    A("  s_waitcnt vmcnt(0)")
    A("L_sok:")
    chk(15, 19, 23, "L_noo")
    opoll()
    A("L_noo:")
    A("  v_max3_f32 v8, v108, v24, v28")
    A("  v_max_f32 v8, v8, v32")
    A("  v_sub_f32 v108, v108, v8")
    for k in range(3):
        A("  v_sub_f32 v%d, v%d, v8" % (24 + 4 * k, 24 + 4 * k))
    A("  v_exp_f32 v108, v108")
    for k in range(3):
        A("  v_exp_f32 v%d, v%d" % (24 + 4 * k, 24 + 4 * k))
    A("  v_mul_f32 v109, v108, v109")
    for k in range(3):
        A("  v_fmac_f32 v109, v%d, v%d" % (24 + 4 * k, 25 + 4 * k))
    A("  v_rcp_f32 v109, v109")
    A("  s_mov_b32 s57, 0x200000")
    A("  v_mul_f32 v108, v108, v109")
    for k in range(3):
        A("  v_mul_f32 v%d, v%d, v109" % (24 + 4 * k, 24 + 4 * k))
    A("  v_pk_mul_f32 v[96:97], v[96:97], v[108:109] op_sel_hi:[1,0]")
    A("  v_pk_mul_f32 v[98:99], v[98:99], v[108:109] op_sel_hi:[1,0]")
    A("L_opoll:")
    A("  s_waitcnt vmcnt(0)")
    chk(15, 19, 23, "L_ook")
    opoll()
    A("  s_sub_u32 s57, s57, 1")
    A("  s_cbranch_scc0 L_opoll")
    A("  s_waitcnt vmcnt(0)")
    A("L_ook:")
    ST(10)
    for k in range(3):
        b = 12 + 4 * k
        A("  v_perm_b32 v%d, v%d, v%d, s4" % (b + 3, b + 2, b + 1))
    for k in range(3):
        b = 12 + 4 * k
        A("  v_pk_fma_f32 v[96:97], v[%d:%d], v[%d:%d], v[96:97] op_sel_hi:[1,0,1]" % (b, b + 1, 24 + 4 * k, 25 + 4 * k))
        A("  v_perm_b32 v%d, v%d, v%d, s5" % (b + 3, b + 3, b))
    for k in range(3):
        b = 12 + 4 * k
        A("  v_pk_fma_f32 v[98:99], v[%d:%d], v[%d:%d], v[98:99] op_sel_hi:[1,0,1]" % (b + 2, b + 3, 24 + 4 * k, 25 + 4 * k))
    A("  v_cvt_pk_bf16_f32 v96, v96, v97")
    A("  v_cvt_pk_bf16_f32 v97, v98, v99")
    A("  buffer_store_dwordx2 v[96:97], v93, s[40:43], 0 offen")
    if stamps:
        A("L_end:")
        A("  s_waitcnt vmcnt(0)")
        ST(11)
        if da >= 0:
            if skew:
                A("  s_cmp_eq_u32 s72, 0")
                A("  s_cbranch_scc1 L_exit")
                A("  buffer_load_dword v9, v92, s[36:39], 0 offen offset:4 sc1")
                A("  s_waitcnt vmcnt(0)")
                A("  v_readfirstlane_b32 s57, v9")
                if skew == 1:
                    A("  s_sub_u32 s56, s%d, s57" % (64 + 2 * db))
                else:
                    A("  s_sub_u32 s56, s57, s%d" % (64 + 2 * db))
                A("  s_max_i32 s56, s56, 0")
                A("  s_add_u32 s%d, s%d, s56" % (64 + 2 * 8, 64 + 2 * da))
                db = 8
            A("  s_cmp_eq_u32 s%d, 0" % (64 + 2 * da))
            A("  s_cbranch_scc1 L_exit")
            A("  s_cmp_eq_u32 s%d, 0" % (64 + 2 * db))
            A("  s_cbranch_scc1 L_exit")
            A("  s_sub_u32 s56, s%d, s%d" % (64 + 2 * db, 64 + 2 * da))
            A("  s_min_u32 s56, s56, 5000")
            A("  s_mul_i32 s56, s56, %d" % dk)
            A("L_dspin:")
            A("  s_memrealtime s[58:59]")
            A("  s_waitcnt lgkmcnt(0)")
            A("  s_sub_u32 s57, s58, s86")
            A("  s_cmp_lt_u32 s57, s56")
            A("  s_cbranch_scc1 L_dspin")
        else:
            A("  s_add_u32 s24, s20, 0x8000000")
            A("  s_addc_u32 s25, s21, 0")
            A("  s_mov_b32 s26, 0x100000")
            A("  s_mov_b32 s27, 0x20000")
            A("  s_getreg_b32 s58, hwreg(HW_REG_HW_ID)")
            A("  s_mul_i32 s56, s2, %d" % W)
            A("  v_readfirstlane_b32 s57, v128")
            A("  s_add_u32 s56, s56, s57")
            A("  s_lshl_b32 s56, s56, 7")
            A("  s_mov_b64 exec, 1")
            A("  v_mov_b32 v1, 0")
            for i in range(12):
                A("  v_mov_b32 v2, s%d" % (64 + 2 * i))
                A("  v_mov_b32 v3, s%d" % (65 + 2 * i))
                A("  buffer_store_dwordx2 v[2:3], v1, s[24:27], s56 offen offset:%d" % (8 * i))
                A("  s_nop 1")
            A("  s_getreg_b32 s57, hwreg(HW_REG_XCC_ID)")
            A("  v_mov_b32 v2, s57")
            A("  v_mov_b32 v3, s58")
            A("  buffer_store_dwordx2 v[2:3], v1, s[24:27], s56 offen offset:120")
    A("L_exit:")
    A("  s_endpgm")
    footer(L, 136 if stamps else 128, 96 if stamps else 64)
    s = "\n".join(L) + "\n"
    if stamps:
        s = s.replace("  v_and_b32 v0, 63, v0\n", "  v_and_b32 v0, 63, v0\n  v_mov_b32 v128, v1\n", 1)
    return s

if __name__ == "__main__":
    for a in sys.argv[1:]:
        name, _, kv = a.partition(":")
        kw = {}
        for x in kv.split(","):
            if not x: continue
            k, v = x.split("=")
            kw[k] = int(v)
        open(name, "w").write(gen(**kw))
```

```python
import sys, math, struct
from gen2 import header, footer, f2u, NAME

def gen(nt=1, mapmode=3, stamps=0, N=19, it1=3, it2=6, chkit=14, spec=2, lprio=3, kx=0, li2=0, frac=0, fpar=0,
        agree=1, pretouch=0, pp=0, sleep=0, da=-1, db=-1, dk=10, skew=0, xit=22, outsc=0, trit=8, pk=1, pollfl=0, pubfl=0, light=0, half=0, kasplit=0, vg=128, useo=1, both=0, outpt=0, sel=-1, fsel=0):
    L = []; A = L.append
    NT = " nt" if nt else ""
    W = 5
    def ST(i):
        if stamps and light and i == 4:
            A("  s_mov_b32 s72, 1")
        if stamps and (not light or i == 11):
            A("  s_memrealtime s[%d:%d]" % (64 + 2 * i, 65 + 2 * i))
            A("  s_waitcnt lgkmcnt(0)")
    QL = 65536
    header(L, "; @launch grid=(256,1,1) block=(320,1,1) lds=%d" % (QL + 8192))
    A("  s_load_dwordx16 s[4:19], s[0:1], 0")
    A("  s_load_dwordx2 s[20:21], s[0:1], 64")
    A("  s_cmp_ge_u32 s2, 256")
    A("  s_cbranch_scc1 L_exit")
    if stamps:
        for i in range(1, 12):
            A("  s_mov_b64 s[%d:%d], 0" % (64 + 2 * i, 65 + 2 * i))
        A("  s_memrealtime s[64:65]")
    A("  v_lshrrev_b32 v1, 6, v0")
    A("  v_and_b32 v0, 63, v0")
    A("  v_readfirstlane_b32 s3, v1")
    if mapmode == 0:
        A("  s_lshr_b32 s22, s2, 2")
        A("  s_and_b32 s23, s2, 3")
    else:
        A("  s_and_b32 s22, s2, 7")
        A("  s_lshr_b32 s23, s2, 5")
        A("  s_lshl3_add_u32 s22, s22, s23")
        A("  s_bfe_u32 s23, s2, 0x20003")
    A("  v_lshrrev_b32 v8, 4, v0")
    A("  v_and_b32 v9, 15, v0")
    A("  s_cmp_lg_u32 s3, 0")
    A("  s_cbranch_scc1 L_cons")
    if lprio:
        A("  s_setprio %d" % lprio)
    A("  v_xor_b32 v1, v9, v8")
    A("  v_lshlrev_b32 v1, 4, v1")
    A("  v_lshl_add_u32 v1, v8, 8, v1")
    A("  v_xor_b32 v2, 64, v1")
    A("  v_xor_b32 v3, 0x80, v1")
    A("  v_xor_b32 v4, 0xc0, v1")
    A("  s_lshl_b32 s56, s22, 20")
    A("  s_lshl_b32 s46, s23, 18")
    if kx:
        if kx == 1:
            A("  s_lshr_b32 s52, s2, 5")
        else:
            A("  s_bfe_u32 s52, s2, 0x30003")
        A("  s_lshl_b32 s52, s52, 12")
        A("  s_mov_b32 s45, s46")
        A("  s_xor_b32 s46, s46, s52")
    A("  s_mov_b32 s26, 0x100000")
    A("  s_mov_b32 s27, 0x20000")
    A("  s_xor_b32 s48, s46, 0x1000")
    A("  s_mov_b32 m0, 0")
    A("  v_lshlrev_b32 v5, 1, v8")
    A("  v_xor_b32 v5, v9, v5")
    A("  v_lshlrev_b32 v5, 4, v5")
    A("  v_lshl_add_u32 v5, v8, 8, v5")
    A("  v_xor_b32 v6, 0x80, v5")
    A("  s_mov_b32 s30, 0x100000")
    A("  s_mov_b32 s31, 0x20000")
    if frac:
        if fsel == 0:
            A("  s_getreg_b32 s57, hwreg(HW_REG_XCC_ID, 0, 1)")
        elif fsel == 1:
            A("  s_and_b32 s57, s2, 7")
        else:
            A("  s_and_b32 s57, s2, 1")
        A("  s_cmp_eq_u32 s57, %d" % fpar)
        A("  s_cselect_b64 vcc, -1, 0")
    A("  s_mov_b32 s44, 1")
    A("  s_movk_i32 s47, 0x4000")
    A("  s_waitcnt lgkmcnt(0)")
    ST(1)
    A("  s_add_u32 s24, s6, s56")
    A("  s_addc_u32 s25, s7, 0")
    def ld(kind, soff, i):
        if kind == "k":
            A("  buffer_load_dwordx4 v%d, s[24:27], %s offen offset:%d%s lds" % (1 + i, soff, 1024 * i, NT))
        else:
            A("  buffer_load_dwordx4 v%d, s[28:31], %s offen offset:%d%s lds" % (5 + (i & 1), soff, 1024 * i, NT))
    def tile(kind, s0, s1, wait):
        order = [(u, i) for i in range(4) for u in range(2)] if li2 else [(u, i) for u in range(2) for i in range(4)]
        cur = 0
        for n, (u, i) in enumerate(order):
            if u != cur:
                A("  s_xor_b32 m0, m0, 0x1000"); cur = u
                if wait is None: A("  s_nop 0")
            if wait is not None: wait(n)
            ld(kind, s1 if u else s0, i)
    tile("k", "s46", "s48", None)
    A("  s_add_u32 s28, s8, s56")
    A("  s_addc_u32 s29, s9, 0")
    lag = 1 + (N - 1) // 16
    p = (N - 1) % 16
    assert lag == 2 and N <= 31
    fpos = [q for q in [5, 13, 9, 1, 7, 15, 11, 3, 4, 12, 8, 0, 6, 14, 10, 2] if q != p][:frac]
    cnt = [0]
    def mkwait(base, cond):
        def w(i):
            if cond and (base + i) in fpos:
                cnt[0] += 1
                A("  s_waitcnt vmcnt(%d)" % N)
                A("  s_cbranch_vccnz L_fw%d" % cnt[0])
                A("  s_waitcnt vmcnt(%d)" % (N - 1))
                A("L_fw%d:" % cnt[0])
            else:
                A("  s_waitcnt vmcnt(%d)" % (N - 1))
            if base + i == p:
                if cond:
                    A("  s_cmp_eq_u32 s44, 1")
                    A("  s_cbranch_scc1 L_nobar")
                    A("  s_barrier")
                    A("L_nobar:")
                else:
                    A("  s_barrier")
        return w
    A("L_lloop:")
    if kx:
        A("  s_add_u32 s45, s45, 0x2000")
        A("  s_xor_b32 s49, s45, s52")
    else:
        A("  s_add_u32 s49, s46, 0x2000")
    A("  s_xor_b32 s50, s49, 0x1000")
    A("  s_mov_b32 m0, s47")
    tile("k", "s49", "s50", mkwait(0, True))
    A("  s_add_u32 m0, s47, 0x2000")
    tile("v", "s46", "s48", mkwait(8, True))
    A("  s_mov_b32 s46, s49")
    A("  s_mov_b32 s48, s50")
    A("  s_add_u32 s47, s47, 0x4000")
    A("  s_and_b32 s47, s47, 0xffff")
    A("  s_add_u32 s44, s44, 1")
    A("  s_cmp_lt_u32 s44, 32")
    A("  s_cbranch_scc1 L_lloop")
    A("  s_movk_i32 s47, 0x2000")
    A("  s_mov_b32 m0, s47")
    tile("v", "s46", "s48", mkwait(0, False))
    if p >= 8:
        A("  s_waitcnt vmcnt(24)")
        A("  s_barrier")
    ST(2)
    A("  s_waitcnt vmcnt(16)")
    A("  s_barrier")
    A("  s_waitcnt vmcnt(8)")
    A("  s_barrier")
    A("  s_waitcnt vmcnt(0)")
    ST(3)
    A("  s_barrier")
    if stamps:
        A("  s_branch L_end")
    else:
        A("  s_endpgm")
    A("L_cons:")
    Q, S, PC, KF, VF, ACC, PN = 12, 28, 36, 40, 72, 80, 112
    A("  s_sub_u32 s3, s3, 1")
    A("  v_lshlrev_b32 v91, 4, v0")
    A("  s_lshl_b32 s59, s3, 11")
    A("  s_add_u32 s59, s59, %d" % QL)
    A("  s_lshl_b32 s57, s22, 11")
    A("  s_movk_i32 s34, 2048")
    A("  s_mov_b32 s35, 0x20000")
    A("  s_mov_b32 m0, s59")
    A("  v_xor_b32 v1, v8, v9")
    A("  v_lshlrev_b32 v1, 4, v1")
    A("  v_lshl_add_u32 v1, v9, 8, v1")
    A("  v_xor_b32 v2, 64, v1")
    A("  v_xor_b32 v3, 0x80, v1")
    A("  v_xor_b32 v4, 0xc0, v1")
    A("  v_bfe_u32 v5, v0, 2, 4")
    A("  v_and_b32 v6, 7, v5")
    A("  v_lshlrev_b32 v6, 1, v6")
    A("  v_bfe_u32 v7, v0, 1, 1")
    A("  s_lshl_b32 s56, s3, 2")
    A("  v_add_u32 v7, s56, v7")
    A("  v_xor_b32 v6, v6, v7")
    A("  v_lshlrev_b32 v6, 4, v6")
    A("  v_lshl_add_u32 v5, v5, 8, v6")
    A("  v_and_b32 v6, 1, v0")
    A("  v_lshl_add_u32 v5, v6, 3, v5")
    A("  v_xor_b32 v6, 32, v5")
    A("  v_and_b32 v7, 7, v0")
    A("  v_lshlrev_b32 v7, 8, v7")
    A("  v_lshlrev_b32 v10, 4, v8")
    A("  v_lshlrev_b32 v11, 3, v8")
    A("  s_lshl_b32 s56, s3, 6")
    A("  v_add_u32 v11, s56, v11")
    A("  v_bfe_u32 v93, v0, 3, 1")
    A("  v_lshl_add_u32 v11, v93, 5, v11")
    A("  v_add_u32 v93, v11, v7")
    A("  v_add3_u32 v7, v7, v10, s59")
    A("  v_and_b32 v0, 0x70, v91")
    c = (128 ** -0.5) * math.log2(math.e)
    A("  s_mov_b32 s53, 0x%08x" % f2u(c))
    A("  s_mov_b32 s54, s53")
    A("  s_mov_b32 s55, s53")
    A("  v_mov_b32 v88, 0xff800000")
    A("  v_mov_b32 v89, 0")
    for i in range(4):
        A("  v_mov_b64 v[%d:%d], 0" % (ACC + 2 * i, ACC + 2 * i + 1))
    A("  v_mov_b32 v90, 0")
    A("  v_mov_b32 v92, 0")
    A("  v_mov_b32 v95, 1.0")
    A("  s_waitcnt lgkmcnt(0)")
    A("  s_add_u32 s32, s4, s57")
    A("  s_addc_u32 s33, s5, 0")
    A("  buffer_load_dwordx4 v91, s[32:35], 0 offen lds")
    A("  buffer_load_dwordx4 v91, s[32:35], 0 offen offset:1024 lds")
    A("  s_lshl_b32 s56, s22, 15")
    A("  s_add_u32 s48, s20, s56")
    A("  s_addc_u32 s49, s21, 0")
    A("  s_mov_b32 s50, 0x8000")
    A("  s_mov_b32 s51, 0x20000")
    A("  s_mov_b32 s36, s18")
    A("  s_mov_b32 s37, s19")
    A("  s_movk_i32 s38, 256")
    A("  s_mov_b32 s39, 0x20000")
    A("  s_lshl_b32 s56, s22, 11")
    A("  s_add_u32 s40, s16, s56")
    A("  s_addc_u32 s41, s17, 0")
    A("  s_movk_i32 s42, 2048")
    A("  s_mov_b32 s43, 0x20000")
    A("  s_lshl_b32 s57, s3, 13")
    A("  s_lshl_b32 s56, s23, 11")
    A("  s_add_u32 s60, s56, s57")
    A("  s_lshl_b32 s57, s23, 13")
    for k in range(1, 4):
        A("  s_add_u32 s56, s23, %d" % k)
        A("  s_and_b32 s56, s56, 3")
        A("  s_lshl_b32 s56, s56, 11")
        A("  s_add_u32 s%d, s56, s57" % (60 + k))
    A("  s_add_u32 s24, s20, 0x200000")
    A("  s_addc_u32 s25, s21, 0")
    A("  s_mov_b32 s26, 0x20000")
    A("  s_mov_b32 s27, 0x20000")
    A("  s_lshl_b32 s28, s22, 8")
    A("  s_lshl3_add_u32 s28, s3, s28")
    A("  s_add_u32 s28, s28, 0x10000")
    A("  s_getreg_b32 s30, hwreg(HW_REG_XCC_ID, 0, 4)")
    A("  s_cmp_eq_u32 s3, s23")
    A("  s_cselect_b32 s31, 0, 2")
    A("  s_cselect_b32 s29, %d, -1" % trit)
    A("  s_cselect_b32 s46, %d, -1" % (trit + 3))
    A("  s_xor_b32 s56, s3, 3")
    A("  s_or_b32 s56, s56, s2")
    A("  s_cselect_b32 s44, -1, %d" % it1)
    A("  s_cselect_b32 s45, -1, %d" % it2)
    A("  s_cbranch_scc1 L_notag0")
    A("  buffer_load_dword v94, v92, s[24:27], 0 offen sc1")
    A("L_notag0:")
    A("  s_barrier")
    ST(4)
    def kreads(regs, off):
        for u in range(2):
            for j in range(4):
                r = KF + 16 * u + 4 * j
                A("  ds_read_b128 v[%d:%d], v%d offset:%d" % (r, r + 3, regs[j], off + 4096 * u))
    kreads([1, 2, 3, 4], 0)
    A("  s_waitcnt vmcnt(0)")
    for j in range(4):
        A("  ds_read_b128 v[%d:%d], v7 offset:%d" % (Q + 4 * j, Q + 3 + 4 * j, 64 * j))
    ev = [it1, it2, trit, trit + 3, chkit, chkit + 4, xit, xit + 3, 31]
    A("  s_mov_b32 s32, 0x%x" % sum(1 << e for e in set(ev)))
    A("  s_mov_b32 s33, 1")
    A("  s_mov_b32 s47, 0")
    A("  s_mov_b32 s52, 0")
    A("  s_waitcnt lgkmcnt(0)")
    A("  s_branch L_qk")
    def rescale():
        if pk:
            for i in range(0, 8, 2):
                A("  v_pk_mul_f32 v[%d:%d], v[%d:%d], v[94:95] op_sel:[0,1] op_sel_hi:[1,1]" % (ACC + i, ACC + i + 1, ACC + i, ACC + i + 1))
        else:
            for i in range(8):
                A("  v_mul_f32 v%d, v%d, v95" % (ACC + i, ACC + i))
    def trreads(off, a0=104):
        A("  ds_read_b64_tr_b16 v[%d:%d], v%d offset:%d" % (VF, VF + 1, a0, off))
        A("  ds_read_b64_tr_b16 v[%d:%d], v%d offset:%d" % (VF + 2, VF + 3, a0, off + 4096))
        A("  ds_read_b64_tr_b16 v[%d:%d], v%d offset:%d" % (VF + 4, VF + 5, a0 + 1, off))
        A("  ds_read_b64_tr_b16 v[%d:%d], v%d offset:%d" % (VF + 6, VF + 7, a0 + 1, off + 4096))
    def pv(Pr, n):
        A("  s_waitcnt lgkmcnt(%d)" % (n + 2))
        A("  v_mfma_f32_16x16x32_bf16 v[%d:%d], v[%d:%d], v[%d:%d], v[%d:%d]" % (ACC, ACC + 3, VF, VF + 3, Pr, Pr + 3, ACC, ACC + 3))
        A("  s_waitcnt lgkmcnt(%d)" % n)
        A("  v_mfma_f32_16x16x32_bf16 v[%d:%d], v[%d:%d], v[%d:%d], v[%d:%d]" % (ACC + 4, ACC + 7, VF + 4, VF + 7, Pr, Pr + 3, ACC + 4, ACC + 7))
    A("L_cloop:")
    A("  s_barrier")
    trreads(0x2000)
    kreads([100, 101, 102, 103], 0)
    rescale()
    pv(PN, 8)
    A("L_qk:")
    for u in range(2):
        for j in range(4):
            d = S + 4 * u
            a = KF + 16 * u + 4 * j
            cc = "0" if j == 0 else "v[%d:%d]" % (d, d + 3)
            A("  s_waitcnt lgkmcnt(%d)" % (7 - 4 * u - j))
            A("  v_mfma_f32_16x16x32_bf16 v[%d:%d], v[%d:%d], v[%d:%d], %s" % (d, d + 3, a, a + 3, Q + 4 * j, Q + 3 + 4 * j, cc))
    A("  s_add_u32 s52, s52, 0x4000")
    A("  s_and_b32 s52, s52, 0xffff")
    for k in range(6):
        A("  v_add_u32 v%d, s52, v%d" % (100 + k, 1 + k))
    A("  v_mov_b32 v95, 1.0")
    A("  v_max3_f32 v8, v%d, v%d, v%d" % (S, S + 1, S + 2))
    A("  v_max3_f32 v8, v8, v%d, v%d" % (S + 3, S + 4))
    A("  v_max3_f32 v8, v8, v%d, v%d" % (S + 5, S + 6))
    A("  v_max_f32 v8, v8, v%d" % (S + 7))
    A("  v_mul_f32 v8, s53, v8")
    A("  v_cmp_gt_f32 vcc, v8, v88")
    A("  s_cbranch_vccz L_skip")
    A("  v_mov_b32 v9, v8")
    A("  s_nop 1")
    A("  v_permlane32_swap_b32 v8, v9")
    A("  v_max_f32 v8, v8, v9")
    A("  v_mov_b32 v9, v8")
    A("  s_nop 1")
    A("  v_permlane16_swap_b32 v8, v9")
    A("  v_max3_f32 v8, v8, v9, v88")
    A("  v_sub_f32 v95, v88, v8")
    A("  v_exp_f32 v95, v95")
    A("  v_mov_b32 v88, v8")
    A("  v_mul_f32 v89, v89, v95")
    A("L_skip:")
    if pk:
        for i in range(0, 8, 2):
            A("  v_pk_fma_f32 v[%d:%d], v[%d:%d], s[54:55], v[88:89] op_sel_hi:[1,1,0] neg_lo:[0,0,1] neg_hi:[0,0,1]" % (S + i, S + i + 1, S + i, S + i + 1))
    else:
        for i in range(8):
            A("  v_fma_f32 v%d, v%d, s53, -v88" % (S + i, S + i))
    for i in range(8):
        A("  v_exp_f32 v%d, v%d" % (S + i, S + i))
    for m in range(4):
        A("  v_cvt_pk_bf16_f32 v%d, v%d, v%d" % (PN + m, S + 2 * m, S + 1 + 2 * m))
    if pk:
        A("  v_pk_add_f32 v[%d:%d], v[%d:%d], v[%d:%d]" % (S, S + 1, S, S + 1, S + 2, S + 3))
        A("  v_pk_add_f32 v[%d:%d], v[%d:%d], v[%d:%d]" % (S + 4, S + 5, S + 4, S + 5, S + 6, S + 7))
        A("  v_pk_add_f32 v[%d:%d], v[%d:%d], v[%d:%d]" % (S, S + 1, S, S + 1, S + 4, S + 5))
        A("  v_add_f32 v89, v89, v%d" % S)
        A("  v_add_f32 v89, v89, v%d" % (S + 1))
    else:
        for i in range(8):
            A("  v_add_f32 v89, v89, v%d" % (S + i))
    A("  s_add_u32 s47, s47, 1")
    A("  s_bitcmp1_b64 s[32:33], s47")
    A("  s_cbranch_scc0 L_cloop")
    A("  s_cmp_eq_u32 s47, 32")
    A("  s_cbranch_scc1 L_final")
    A("  s_cmp_eq_u32 s47, 31")
    A("  s_cbranch_scc1 L_lastk")
    A("  s_cmp_eq_u32 s47, s44")
    A("  s_cbranch_scc0 L_not1")
    A("  s_waitcnt vmcnt(0)")
    A("  v_add_u32 v94, 1, v94")
    A("  v_max_u32 v94, 1, v94")
    A("  s_mov_b64 exec, 1")
    A("  buffer_store_dword v94, v92, s[24:27], 0 offen sc1")
    A("  s_mov_b64 exec, -1")
    A("L_not1:")
    A("  s_cmp_eq_u32 s47, s45")
    A("  s_cbranch_scc0 L_not2")
    A("  s_waitcnt vmcnt(0)")
    A("  s_mov_b64 exec, 1")
    if skew:
        A("  v_mov_b32 v9, s64")
        A("  buffer_store_dword v9, v92, s[36:39], 0 offen offset:4 sc1")
    A("  buffer_store_dword v94, v92, s[36:39], 0 offen sc1")
    A("  s_mov_b64 exec, -1")
    A("L_not2:")
    A("  s_cmp_eq_u32 s47, s29")
    A("  s_cbranch_scc0 L_notr1")
    A("  s_lshl_b32 s57, s22, 8")
    A("  s_add_u32 s4, s10, s57")
    A("  s_addc_u32 s5, s11, 0")
    A("  s_movk_i32 s6, 256")
    A("  s_mov_b32 s7, 0x20000")
    TK = [36, 96, 108, 116]
    for j in range(4):
        A("  buffer_load_dwordx4 v[%d:%d], v10, s[4:7], 0 offen offset:%d" % (TK[j], TK[j] + 3, 64 * j))
    A("  s_add_u32 s4, s12, s57")
    A("  s_addc_u32 s5, s13, 0")
    A("  s_lshr_b32 s57, s22, 2")
    A("  buffer_load_dwordx2 v[120:121], v11, s[4:7], 0 offen")
    A("  s_mov_b32 s4, s14")
    A("  s_mov_b32 s5, s15")
    A("  s_movk_i32 s6, 32")
    A("  s_lshl_b32 s57, s57, 1")
    A("  buffer_load_ushort v122, v92, s[4:7], s57 offen")
    if outpt == 1:
        A("  buffer_load_dwordx2 v[106:107], v93, s[40:43], 0 offen")
    A("L_notr1:")
    A("  s_cmp_eq_u32 s47, s46")
    A("  s_cbranch_scc0 L_notr2")
    A("  s_waitcnt vmcnt(0)")
    for j in range(4):
        cc = "0" if j == 0 else "v[124:127]"
        A("  v_mfma_f32_16x16x32_bf16 v[124:127], v[%d:%d], v[%d:%d], %s" % (TK[j], TK[j] + 3, Q + 4 * j, Q + 3 + 4 * j, cc))
    A("  v_lshlrev_b32 v122, 16, v122")
    A("  v_sub_f32 v122, 1.0, v122")
    A("  v_mul_f32 v122, 0x%08x, v122" % f2u(-1e9 * math.log2(math.e)))
    A("  v_and_b32 v119, 0xffff0000, v120")
    A("  v_lshlrev_b32 v118, 16, v120")
    A("  v_lshlrev_b32 v120, 16, v121")
    A("  v_and_b32 v121, 0xffff0000, v121")
    A("  s_nop 1")
    A("  v_fma_f32 v122, v124, s53, v122")
    A("L_notr2:")
    A("  s_cmp_eq_u32 s47, %d" % chkit)
    A("  s_cbranch_scc0 L_nochk")
    A("  buffer_load_dword v90, v92, s[36:39], 0 offen sc1")
    A("L_nochk:")
    A("  s_cmp_eq_u32 s47, %d" % (chkit + 4))
    A("  s_cbranch_scc0 L_tagdone")
    A("  s_mov_b32 s57, 0x200000")
    A("L_tagspin:")
    A("  s_waitcnt vmcnt(0)")
    A("  v_readfirstlane_b32 s56, v90")
    A("  s_cmp_lg_u32 s56, 0")
    A("  s_cbranch_scc1 L_tagok")
    A("  buffer_load_dword v90, v92, s[36:39], 0 offen sc1")
    A("  s_sub_u32 s57, s57, 1")
    A("  s_cbranch_scc0 L_tagspin")
    A("L_tagok:")
    if agree:
        A("  s_cmp_lg_u32 s31, 0")
        A("  s_cbranch_scc1 L_tagdone")
        A("  v_mov_b32 v8, v90")
        A("  v_mov_b32 v9, s30")
        A("  s_mov_b64 exec, 1")
        A("  buffer_store_dwordx2 v[8:9], v92, s[24:27], s28 offen sc1")
        A("  s_mov_b64 exec, -1")
    A("L_tagdone:")
    if agree:
        A("  s_cmp_eq_u32 s47, %d" % xit)
        A("  s_cbranch_scc0 L_nox1")
        A("  buffer_load_dwordx2 v[106:107], v92, s[24:27], s28 offen sc1")
        A("L_nox1:")
        A("  s_cmp_eq_u32 s47, %d" % (xit + 3))
        A("  s_cbranch_scc0 L_nox2")
        A("  s_waitcnt vmcnt(0)")
        A("  v_readfirstlane_b32 s57, v106")
        A("  v_readfirstlane_b32 s58, v107")
        A("  s_xor_b32 s57, s57, s56")
        A("  s_xor_b32 s58, s58, s30")
        A("  s_or_b32 s57, s57, s58")
        A("  s_cbranch_scc1 L_nox2")
        A("  s_lshr_b32 s31, s31, 1")
        if pretouch:
            A("  s_cbranch_scc0 L_nox2")
            A("  v_mov_b64 v[98:99], 0")
            A("  buffer_store_dwordx4 v[96:99], v91, s[48:51], s60 offen")
            A("  buffer_store_dwordx4 v[96:99], v0, s[48:51], s60 offen offset:1024")
        A("L_nox2:")
    A("  s_branch L_cloop")
    A("L_lastk:")
    A("  s_barrier")
    kreads([100, 101, 102, 103], 0)
    rescale()
    A("  v_mov_b64 v[%d:%d], v[%d:%d]" % (PC, PC + 1, PN, PN + 1))
    A("  v_mov_b64 v[%d:%d], v[%d:%d]" % (PC + 2, PC + 3, PN + 2, PN + 3))
    A("  v_mov_b64 v[116:117], v[104:105]")
    A("  s_branch L_qk")
    A("L_final:")
    A("  v_mov_b32 v9, v89")
    A("  v_mov_b32 v108, v88")
    A("  v_mov_b32 v99, v90")
    A("  v_permlane32_swap_b32 v89, v9")
    A("  v_add_f32 v89, v89, v9")
    A("  v_mov_b32 v9, v89")
    A("  v_mov_b32 v110, v90")
    A("  s_mov_b32 s57, 0x200000")
    A("  v_permlane16_swap_b32 v89, v9")
    A("  v_add_f32 v109, v89, v9")
    PF = ["sc1", "nt", "sc0 nt", "sc0", "sc1 nt"][pollfl]
    def spoll():
        for k in range(3):
            A("  buffer_load_dwordx4 v[%d:%d], v0, s[48:51], s%d offen offset:1024 %s" % (24 + 4 * k, 27 + 4 * k, 61 + k, PF))
    def opoll():
        for k in range(3):
            A("  buffer_load_dwordx4 v[%d:%d], v91, s[48:51], s%d offen %s" % (12 + 4 * k, 15 + 4 * k, 61 + k, PF))
    A("  s_cmp_eq_u32 s31, 1")
    A("  s_cbranch_scc0 L_fin2")
    A("  s_mov_b64 exec, 0xff")
    A("  buffer_store_dwordx4 v[108:111], v0, s[48:51], s60 offen offset:1024")
    A("  s_mov_b64 exec, -1")
    A("L_fin3:")
    A("  s_barrier")
    trreads(0x2000, 116)
    A("  s_mov_b32 s4, 0x07060501")
    A("  s_mov_b32 s5, 0x07060502")
    A("  s_mov_b32 s6, 0x07060503")
    pv(PC, 0)
    A("  s_mov_b32 vcc_lo, 0xff00ff00")
    A("  s_mov_b32 vcc_hi, 0xff00ff00")
    A("  s_cmp_eq_u32 s31, 1")
    A("  s_nop 4")
    rescale()
    ST(6)
    A("  s_barrier")
    trreads(0x2000)
    pv(PN, 0)
    A("  s_nop 7")
    for r, d in [(3, 111), (0, 96), (1, 97), (2, 98)]:
        A("  v_cndmask_b32 v%d, v%d, v%d, vcc" % (d, ACC + r, ACC + 4 + r))
    A("  s_cbranch_scc0 L_other")
    pf = ["", " sc0", " nt"][pubfl]
    def pack():
        for r in range(3):
            A("  v_perm_b32 v%d, v%d, v111, s%d" % (96 + r, 96 + r, 4 + r))
    pack()
    A("  buffer_store_dwordx4 v[96:99], v91, s[48:51], s60 offen%s" % pf)
    ST(9)
    A("  s_branch L_end" if stamps else "  s_endpgm")
    A("L_other:")
    A("  s_cmp_eq_u32 s31, 0")
    A("  s_cbranch_scc1 L_consume")
    pack()
    A("  buffer_store_dwordx4 v[96:99], v91, s[48:51], s60 offen sc1")
    ST(9)
    A("  s_branch L_end" if stamps else "  s_endpgm")
    A("L_fin2:")
    A("  s_cmp_eq_u32 s31, 0")
    A("  s_cbranch_scc1 L_fin4")
    A("  s_mov_b64 exec, 0xff")
    A("  buffer_store_dwordx4 v[108:111], v0, s[48:51], s60 offen offset:1024 sc1")
    A("  s_mov_b64 exec, -1")
    A("  s_branch L_fin3")
    A("L_fin4:")
    if outpt == 2:
        A("  buffer_load_dwordx2 v[106:107], v93, s[40:43], 0 offen")
    spoll()
    if spec == 2: opoll()
    A("  v_max_f32 v8, v108, v122")
    A("  v_sub_f32 v123, v108, v8")
    A("  v_sub_f32 v122, v122, v8")
    A("  v_exp_f32 v123, v123")
    A("  v_exp_f32 v122, v122")
    A("  v_mov_b32 v108, v8")
    A("  v_fma_f32 v109, v109, v123, v122")
    for r in range(4):
        A("  v_mul_f32 v%d, v122, v%d" % (118 + r, 118 + r))
    A("  s_branch L_fin3")
    A("L_consume:")
    for r, d in enumerate([96, 97, 98, 111]):
        A("  v_fma_f32 v%d, v%d, v123, v%d" % (96 + r, d, 118 + r))
    ST(9)
    A("  s_mov_b32 s4, 0x04000c0c")
    A("  s_mov_b32 s5, 0x0706000c")
    A("L_spoll:")
    A("  s_waitcnt vmcnt(0)")
    A("  v_xor_b32 v8, v26, v90")
    A("  v_xor_b32 v9, v30, v90")
    A("  v_xor_b32 v10, v34, v90")
    A("  v_or3_b32 v8, v8, v9, v10")
    A("  v_cmp_ne_u32 vcc, 0, v8")
    A("  s_cbranch_vccz L_sok")
    spoll()
    if both: opoll()
    A("  s_sub_u32 s57, s57, 1")
    A("  s_cbranch_scc0 L_spoll")
    A("  s_waitcnt vmcnt(0)")
    A("L_sok:")
    if useo:
        A("  v_xor_b32 v8, v15, v90")
        A("  v_xor_b32 v9, v19, v90")
        A("  v_xor_b32 v10, v23, v90")
        A("  v_or3_b32 v8, v8, v9, v10")
        A("  v_cmp_ne_u32 vcc, 0, v8")
        A("  s_cbranch_vccz L_noo")
    opoll()
    A("L_noo:")
    A("  v_max3_f32 v8, v108, v24, v28")
    A("  v_max_f32 v8, v8, v32")
    A("  v_sub_f32 v108, v108, v8")
    for k in range(3):
        A("  v_sub_f32 v%d, v%d, v8" % (24 + 4 * k, 24 + 4 * k))
    A("  v_exp_f32 v108, v108")
    for k in range(3):
        A("  v_exp_f32 v%d, v%d" % (24 + 4 * k, 24 + 4 * k))
    A("  v_mul_f32 v109, v108, v109")
    for k in range(3):
        A("  v_fmac_f32 v109, v%d, v%d" % (24 + 4 * k, 25 + 4 * k))
    A("  v_rcp_f32 v109, v109")
    A("  s_mov_b32 s57, 0x200000")
    A("  v_mul_f32 v108, v108, v109")
    for k in range(3):
        A("  v_mul_f32 v%d, v%d, v109" % (24 + 4 * k, 24 + 4 * k))
    A("  v_pk_mul_f32 v[96:97], v[96:97], v[108:109] op_sel_hi:[1,0]")
    A("  v_pk_mul_f32 v[98:99], v[98:99], v[108:109] op_sel_hi:[1,0]")
    A("L_opoll:")
    A("  s_waitcnt vmcnt(0)")
    A("  v_xor_b32 v8, v15, v90")
    A("  v_xor_b32 v9, v19, v90")
    A("  v_xor_b32 v10, v23, v90")
    A("  v_or3_b32 v8, v8, v9, v10")
    A("  v_cmp_ne_u32 vcc, 0, v8")
    A("  s_cbranch_vccz L_ook")
    opoll()
    A("  s_sub_u32 s57, s57, 1")
    A("  s_cbranch_scc0 L_opoll")
    A("  s_waitcnt vmcnt(0)")
    A("L_ook:")
    ST(10)
    for k in range(3):
        b = 12 + 4 * k
        A("  v_perm_b32 v%d, v%d, v%d, s4" % (b + 3, b + 2, b + 1))
    for k in range(3):
        b = 12 + 4 * k
        A("  v_pk_fma_f32 v[96:97], v[%d:%d], v[%d:%d], v[96:97] op_sel_hi:[1,0,1]" % (b, b + 1, 24 + 4 * k, 25 + 4 * k))
        A("  v_perm_b32 v%d, v%d, v%d, s5" % (b + 3, b + 3, b))
    for k in range(3):
        b = 12 + 4 * k
        A("  v_pk_fma_f32 v[98:99], v[%d:%d], v[%d:%d], v[98:99] op_sel_hi:[1,0,1]" % (b + 2, b + 3, 24 + 4 * k, 25 + 4 * k))
    A("  v_cvt_pk_bf16_f32 v96, v96, v97")
    A("  v_cvt_pk_bf16_f32 v97, v98, v99")
    A("  buffer_store_dwordx2 v[96:97], v93, s[40:43], 0 offen%s" % ["", " sc1", " nt", " sc0 sc1"][outsc])
    if stamps:
        A("L_end:")
        A("  s_waitcnt vmcnt(0)")
        ST(11)
        if da >= 0:
            if skew:
                if sel >= 0:
                    A("  s_and_b32 s56, s2, 7")
                    A("  s_cmp_lg_u32 s56, %d" % sel)
                    A("  s_cbranch_scc1 L_exit")
                A("  s_cmp_eq_u32 s72, 0")
                A("  s_cbranch_scc1 L_exit")
                A("  buffer_load_dword v9, v92, s[36:39], 0 offen offset:4 sc1")
                A("  s_waitcnt vmcnt(0)")
                A("  v_readfirstlane_b32 s57, v9")
                if skew == 1:
                    A("  s_sub_u32 s56, s%d, s57" % (64 + 2 * db))
                else:
                    A("  s_sub_u32 s56, s57, s%d" % (64 + 2 * db))
                A("  s_max_i32 s56, s56, 0")
                A("  s_add_u32 s%d, s%d, s56" % (64 + 2 * 8, 64 + 2 * da))
                db = 8
            A("  s_cmp_eq_u32 s%d, 0" % (64 + 2 * da))
            A("  s_cbranch_scc1 L_exit")
            A("  s_cmp_eq_u32 s%d, 0" % (64 + 2 * db))
            A("  s_cbranch_scc1 L_exit")
            A("  s_sub_u32 s56, s%d, s%d" % (64 + 2 * db, 64 + 2 * da))
            A("  s_min_u32 s56, s56, 5000")
            A("  s_mul_i32 s56, s56, %d" % dk)
            A("L_dspin:")
            A("  s_memrealtime s[58:59]")
            A("  s_waitcnt lgkmcnt(0)")
            A("  s_sub_u32 s57, s58, s86")
            A("  s_cmp_lt_u32 s57, s56")
            A("  s_cbranch_scc1 L_dspin")
        else:
            A("  s_add_u32 s24, s20, 0x8000000")
            A("  s_addc_u32 s25, s21, 0")
            A("  s_mov_b32 s26, 0x100000")
            A("  s_mov_b32 s27, 0x20000")
            A("  s_getreg_b32 s58, hwreg(HW_REG_HW_ID)")
            A("  s_mul_i32 s56, s2, %d" % W)
            A("  v_readfirstlane_b32 s57, v128")
            A("  s_add_u32 s56, s56, s57")
            A("  s_lshl_b32 s56, s56, 7")
            A("  s_mov_b64 exec, 1")
            A("  v_mov_b32 v1, 0")
            for i in range(12):
                A("  v_mov_b32 v2, s%d" % (64 + 2 * i))
                A("  v_mov_b32 v3, s%d" % (65 + 2 * i))
                A("  buffer_store_dwordx2 v[2:3], v1, s[24:27], s56 offen offset:%d" % (8 * i))
                A("  s_nop 1")
            A("  s_getreg_b32 s57, hwreg(HW_REG_XCC_ID)")
            A("  v_mov_b32 v2, s57")
            A("  v_mov_b32 v3, s58")
            A("  buffer_store_dwordx2 v[2:3], v1, s[24:27], s56 offen offset:120")
    A("L_exit:")
    A("  s_endpgm")
    footer(L, 136 if stamps else vg, 96 if stamps else 64)
    s = "\n".join(L) + "\n"
    if stamps:
        s = s.replace("  v_and_b32 v0, 63, v0\n", "  v_and_b32 v0, 63, v0\n  v_mov_b32 v128, v1\n", 1)
    return s

if __name__ == "__main__":
    for a in sys.argv[1:]:
        name, _, kv = a.partition(":")
        kw = {}
        for x in kv.split(","):
            if not x: continue
            k, v = x.split("=")
            kw[k] = int(v)
        open(name, "w").write(gen(**kw))
```

```python
import sys, math, struct
from gen2 import header, footer, f2u, NAME

def gen(nt=1, stamps=0, N=20, it1=3, it2=6, trit=7, chkit=10, xit=19, lprio=3, light=0,
        da=-1, db=-1, dk=10, skew=0, bst=0, uo=2, vtouch=0, prog=0, kt=0, N2=28, vt0=0, N3=20):
    L = []; A = L.append
    NT = " nt" if nt else ""
    W = 5
    def ST(i):
        if stamps and light and i == 4:
            A("  s_mov_b32 s72, 1")
        if stamps and (not light or i == 11):
            A("  s_memrealtime s[%d:%d]" % (64 + 2 * i, 65 + 2 * i))
            A("  s_waitcnt lgkmcnt(0)")
    SL = 65536
    QL = SL + 24576
    MT = SL + 32768
    header(L, "; @launch grid=(256,1,1) block=(320,1,1) lds=%d" % (MT + 256))
    A("  s_load_dwordx16 s[4:19], s[0:1], 0")
    A("  s_load_dwordx2 s[20:21], s[0:1], 64")
    A("  s_cmp_ge_u32 s2, 256")
    A("  s_cbranch_scc1 L_exit")
    if stamps:
        for i in range(1, 12):
            A("  s_mov_b64 s[%d:%d], 0" % (64 + 2 * i, 65 + 2 * i))
        A("  s_memrealtime s[64:65]")
    A("  v_lshrrev_b32 v1, 6, v0")
    A("  v_and_b32 v0, 63, v0")
    A("  v_readfirstlane_b32 s3, v1")
    A("  s_and_b32 s22, s2, 7")
    A("  s_lshr_b32 s23, s2, 5")
    A("  s_lshl3_add_u32 s22, s22, s23")
    A("  s_bfe_u32 s23, s2, 0x20003")
    A("  v_lshrrev_b32 v8, 4, v0")
    A("  v_and_b32 v9, 15, v0")
    A("  s_cmp_lg_u32 s3, 0")
    A("  s_cbranch_scc1 L_cons")
    if lprio:
        A("  s_setprio %d" % lprio)
    A("  v_xor_b32 v1, v9, v8")
    A("  v_lshlrev_b32 v1, 4, v1")
    A("  v_lshl_add_u32 v1, v8, 8, v1")
    A("  v_xor_b32 v2, 64, v1")
    A("  v_xor_b32 v3, 0x80, v1")
    A("  v_xor_b32 v4, 0xc0, v1")
    A("  s_lshl_b32 s56, s22, 20")
    A("  s_lshl_b32 s46, s23, 18")
    A("  s_mov_b32 s45, s46")
    A("  s_mov_b32 s26, 0x100000")
    A("  s_mov_b32 s27, 0x20000")
    A("  s_mov_b32 m0, 0")
    A("  v_lshlrev_b32 v5, 1, v8")
    A("  v_xor_b32 v5, v9, v5")
    A("  v_lshlrev_b32 v5, 4, v5")
    A("  v_lshl_add_u32 v5, v8, 8, v5")
    A("  v_xor_b32 v6, 0x80, v5")
    A("  s_mov_b32 s44, 0")
    A("  s_waitcnt lgkmcnt(0)")
    ST(1)
    A("  s_add_u32 s24, s6, s56")
    A("  s_addc_u32 s25, s7, 0")
    p = (N - 1) % 16
    assert 17 <= N <= 32
    def group(kind, Nw=None, first=True):
        Nw = Nw or N
        p = (Nw - 1) - 16
        assert 0 <= p < 16
        for u in range(4):
            for i in range(4):
                A("  s_waitcnt vmcnt(%d)" % (Nw - 1))
                if 4 * u + i == p:
                    if kind == "k" and first:
                        A("  s_cmp_lt_u32 s44, 2")
                        A("  s_cbranch_scc1 L_nobar")
                    if bst:
                        A("  s_memtime s[88:89]")
                        A("  s_waitcnt lgkmcnt(0)")
                    A("  s_barrier")
                    if bst:
                        A("  s_memtime s[90:91]")
                        A("  s_waitcnt lgkmcnt(0)")
                        A("  s_sub_u32 s88, s90, s88")
                        A("  s_cmp_lt_u32 s44, 6")
                        A("  s_cselect_b32 s89, s88, 0")
                        A("  s_add_u32 s74, s74, s89")
                        A("  s_add_u32 s76, s76, s88")
                        A("  s_max_u32 s78, s78, s88")
                    if kind == "k" and first:
                        A("L_nobar:")
                A("  buffer_load_dwordx4 v%d, s[24:27], s46 offen offset:%d%s lds" % ((1 + i) if kind == "k" else (5 + (i & 1)), 1024 * i, NT))
            if not uo:
                A("  s_add_u32 s46, s46, 0x1000")
            elif u < 3:
                if uo == 1:
                    A("  s_add_u32 s46, s46, 0x%x" % [0x1000, 0x7000, 0x1000][u])
                else:
                    A("  s_xor_b32 s46, s46, 0x%x" % [0x2000, 0x3000, 0x2000][u])
            A("  s_add_u32 m0, m0, 0x1000")
        A("  s_and_b32 m0, m0, 0xffff")
        A("  s_add_u32 s44, s44, 1")
        if prog:
            for gi, slot in ((8, 4), (14, 5), (16, 6), (18, 7), (20, 8), (24, 9)):
                if (gi <= 16) == (kind == "k") and (first or gi == 16 or gi == 18) and not (first and ((kt and gi == 16) or (vt0 and gi == 18))):
                    A("  s_cmp_eq_u32 s44, %d" % gi)
                    A("  s_cbranch_scc0 L_pg%d" % gi)
                    A("  s_memrealtime s[%d:%d]" % (64 + 2 * slot, 65 + 2 * slot))
                    A("L_pg%d:" % gi)
        if uo == 2:
            A("  s_brev_b32 s47, s44")
            A("  s_lshr_b32 s47, s47, 15")
            A("  s_and_b32 s47, s47, 0x1c000")
            A("  s_and_b32 s48, s44, 8")
            A("  s_lshl_b32 s48, s48, 14")
            A("  s_or_b32 s46, s45, s47")
            A("  s_or_b32 s46, s46, s48")
        if uo == 1:
            A("  s_and_b32 s47, s44, 5")
            A("  s_and_b32 s48, s44, 10")
            A("  s_mul_i32 s47, s47, 0x3000")
            A("  s_mul_i32 s48, s48, 0xc000")
            A("  s_and_b32 s47, s47, 0x6000")
            A("  s_and_b32 s48, s48, 0x30000")
            A("  s_or_b32 s46, s45, s47")
            A("  s_or_b32 s46, s46, s48")
    A("L_lk:")
    group("k")
    A("  s_cmp_lt_u32 s44, %d" % (16 - kt))
    A("  s_cbranch_scc1 L_lk")
    if kt:
        A("L_lk2:")
        group("k", N2, False)
        A("  s_cmp_lt_u32 s44, 16")
        A("  s_cbranch_scc1 L_lk2")
    A("  s_add_u32 s24, s8, s56")
    A("  s_addc_u32 s25, s9, 0")
    if not uo: A("  s_lshl_b32 s46, s23, 18")
    if vt0:
        A("L_lv0:")
        group("v", N3, False)
        A("  s_cmp_lt_u32 s44, %d" % (16 + vt0))
        A("  s_cbranch_scc1 L_lv0")
    A("L_lv:")
    group("v")
    A("  s_cmp_lt_u32 s44, 32")
    A("  s_cbranch_scc1 L_lv")
    ST(2)
    A("  s_waitcnt vmcnt(16)")
    A("  s_barrier")
    A("  s_waitcnt vmcnt(8)")
    A("  s_barrier")
    A("  s_waitcnt vmcnt(0)")
    if prog:
        A("  s_memrealtime s[70:71]")
        A("  s_waitcnt lgkmcnt(0)")
    ST(3)
    A("  s_barrier")
    A("  s_branch L_end" if stamps else "  s_endpgm")
    A("L_cons:")
    Q, S, PA, KF, SA, SB, VB, VA, ACC, PB = 12, 28, 36, 40, 40, 48, 64, 72, 80, 112
    A("  s_sub_u32 s3, s3, 1")
    A("  v_lshlrev_b32 v91, 4, v0")
    A("  s_lshl_b32 s59, s3, 11")
    A("  s_add_u32 s59, s59, %d" % QL)
    A("  s_lshl_b32 s57, s22, 11")
    A("  s_movk_i32 s34, 2048")
    A("  s_mov_b32 s35, 0x20000")
    A("  s_mov_b32 m0, s59")
    A("  v_xor_b32 v1, v8, v9")
    A("  v_lshlrev_b32 v1, 4, v1")
    A("  v_lshl_add_u32 v1, v9, 8, v1")
    A("  s_lshl_b32 s56, s3, 12")
    A("  v_add_u32 v1, s56, v1")
    A("  v_xor_b32 v2, 64, v1")
    A("  v_xor_b32 v3, 0x80, v1")
    A("  v_xor_b32 v4, 0xc0, v1")
    A("  v_bfe_u32 v5, v0, 2, 4")
    A("  v_and_b32 v6, 7, v5")
    A("  v_lshlrev_b32 v6, 1, v6")
    A("  v_bfe_u32 v7, v0, 1, 1")
    A("  s_lshl_b32 s56, s3, 2")
    A("  v_add_u32 v7, s56, v7")
    A("  v_xor_b32 v6, v6, v7")
    A("  v_lshlrev_b32 v6, 4, v6")
    A("  v_lshl_add_u32 v5, v5, 8, v6")
    A("  v_and_b32 v6, 1, v0")
    A("  v_lshl_add_u32 v5, v6, 3, v5")
    A("  v_xor_b32 v6, 32, v5")
    A("  v_and_b32 v7, 7, v0")
    A("  v_lshlrev_b32 v7, 8, v7")
    A("  v_lshlrev_b32 v10, 4, v8")
    A("  v_lshlrev_b32 v11, 3, v8")
    A("  s_lshl_b32 s56, s3, 6")
    A("  v_add_u32 v11, s56, v11")
    A("  v_bfe_u32 v93, v0, 3, 1")
    A("  v_lshl_add_u32 v11, v93, 5, v11")
    A("  v_add_u32 v93, v11, v7")
    A("  v_add3_u32 v7, v7, v10, s59")
    A("  v_and_b32 v0, 0x70, v91")
    A("  v_lshl_add_u32 v106, v8, 7, v0")
    A("  v_add_u32 v106, %d, v106" % SL)
    A("  s_lshl_b32 s56, s3, 9")
    A("  v_add_u32 v107, s56, v106")
    A("  v_lshlrev_b32 v95, 4, v9")
    A("  v_add_u32 v95, %d, v95" % MT)
    c = (128 ** -0.5) * math.log2(math.e)
    A("  s_mov_b32 s53, 0x%08x" % f2u(c))
    A("  s_mov_b32 s54, s53")
    A("  s_mov_b32 s55, s53")
    A("  v_mov_b32 v88, 0xff800000")
    A("  v_mov_b32 v89, 0")
    for i in range(4):
        A("  v_mov_b64 v[%d:%d], 0" % (ACC + 2 * i, ACC + 2 * i + 1))
    A("  v_mov_b32 v90, 0")
    A("  v_mov_b32 v92, 0")
    A("  s_waitcnt lgkmcnt(0)")
    A("  s_add_u32 s32, s4, s57")
    A("  s_addc_u32 s33, s5, 0")
    A("  buffer_load_dwordx4 v91, s[32:35], 0 offen lds")
    A("  buffer_load_dwordx4 v91, s[32:35], 0 offen offset:1024 lds")
    A("  s_lshl_b32 s56, s22, 15")
    A("  s_add_u32 s48, s20, s56")
    A("  s_addc_u32 s49, s21, 0")
    A("  s_mov_b32 s50, 0x8000")
    A("  s_mov_b32 s51, 0x20000")
    A("  s_mov_b32 s36, s18")
    A("  s_mov_b32 s37, s19")
    A("  s_movk_i32 s38, 256")
    A("  s_mov_b32 s39, 0x20000")
    A("  s_lshl_b32 s56, s22, 11")
    A("  s_add_u32 s40, s16, s56")
    A("  s_addc_u32 s41, s17, 0")
    A("  s_movk_i32 s42, 2048")
    A("  s_mov_b32 s43, 0x20000")
    A("  s_lshl_b32 s57, s3, 13")
    A("  s_lshl_b32 s56, s23, 11")
    A("  s_add_u32 s60, s56, s57")
    A("  s_lshl_b32 s57, s23, 13")
    for k in range(1, 4):
        A("  s_add_u32 s56, s23, %d" % k)
        A("  s_and_b32 s56, s56, 3")
        A("  s_lshl_b32 s56, s56, 11")
        A("  s_add_u32 s%d, s56, s57" % (60 + k))
    A("  s_add_u32 s24, s20, 0x200000")
    A("  s_addc_u32 s25, s21, 0")
    A("  s_mov_b32 s26, 0x20000")
    A("  s_mov_b32 s27, 0x20000")
    A("  s_lshl_b32 s28, s22, 8")
    A("  s_lshl3_add_u32 s28, s3, s28")
    A("  s_add_u32 s28, s28, 0x10000")
    A("  s_getreg_b32 s30, hwreg(HW_REG_XCC_ID, 0, 4)")
    A("  s_cmp_eq_u32 s3, s23")
    A("  s_cselect_b32 s31, 0, 2")
    A("  s_cselect_b32 s29, %d, -1" % trit)
    A("  s_cselect_b32 s46, %d, -1" % (trit + 3))
    A("  s_xor_b32 s56, s3, 3")
    A("  s_or_b32 s56, s56, s2")
    A("  s_cselect_b32 s44, -1, %d" % it1)
    A("  s_cselect_b32 s45, -1, %d" % it2)
    A("  s_cbranch_scc1 L_notag0")
    A("  buffer_load_dword v94, v92, s[24:27], 0 offen sc1")
    A("L_notag0:")
    ev = [it1, it2, trit, trit + 3, chkit, chkit + 4, 16, xit, xit + 3, 31]
    assert trit + 3 < 16 and it2 < chkit and chkit + 4 < xit
    A("  s_mov_b32 s58, 0x%x" % sum(1 << e for e in set(ev)))
    A("  s_mov_b32 s47, 0")
    A("  s_mov_b32 s52, 0")
    if vtouch:
        A("  s_mov_b32 s32, s8")
        A("  s_mov_b32 s33, s9")
    A("  s_mov_b32 s8, 0x00ff00ff")
    A("  s_mov_b32 s9, 0x00ff00ff")
    A("  s_barrier")
    ST(4)
    for j in range(4):
        A("  ds_read_b128 v[%d:%d], v%d" % (KF + 4 * j, KF + 3 + 4 * j, 1 + j))
    A("  s_waitcnt vmcnt(0)")
    for j in range(4):
        A("  ds_read_b128 v[%d:%d], v7 offset:%d" % (Q + 4 * j, Q + 3 + 4 * j, 64 * j))
    A("  s_waitcnt lgkmcnt(0)")
    A("  s_branch L_kq")
    A("L_kloop:")
    A("  s_barrier")
    for j in range(4):
        A("  ds_read_b128 v[%d:%d], v%d" % (KF + 4 * j, KF + 3 + 4 * j, 100 + j))
    A("L_kq:")
    for j in range(4):
        cc = "0" if j == 0 else "v[%d:%d]" % (S, S + 3)
        A("  s_waitcnt lgkmcnt(%d)" % (3 - j))
        A("  v_mfma_f32_16x16x32_bf16 v[%d:%d], v[%d:%d], v[%d:%d], %s" % (S, S + 3, KF + 4 * j, KF + 3 + 4 * j, Q + 4 * j, Q + 3 + 4 * j, cc))
    A("  s_add_u32 s52, s52, 0x4000")
    A("  s_and_b32 s52, s52, 0xffff")
    A("  s_add_u32 s47, s47, 1")
    for k in range(4):
        A("  v_add_u32 v%d, s52, v%d" % (100 + k, 1 + k))
    A("  s_mov_b64 exec, s[8:9]")
    A("  ds_write_b128 v107, v[%d:%d]" % (S, S + 3))
    A("  s_mov_b64 exec, -1")
    A("  v_max3_f32 v88, v88, v%d, v%d" % (S, S + 1))
    A("  v_max3_f32 v88, v88, v%d, v%d" % (S + 2, S + 3))
    A("  v_add_u32 v107, 0x800, v107")
    A("  s_bitcmp1_b32 s58, s47")
    A("  s_cbranch_scc0 L_kloop")
    A("  s_cmp_eq_u32 s47, 16")
    A("  s_cbranch_scc0 L_events")
    A("  v_mul_f32 v88, s53, v88")
    A("  s_lshl_b32 s56, s3, 2")
    A("  v_mov_b32 v9, v88")
    A("  v_add_u32 v8, s56, v95")
    A("  v_mov_b32 v104, v5")
    A("  v_permlane32_swap_b32 v88, v9")
    A("  v_max_f32 v88, v88, v9")
    A("  v_mov_b32 v9, v88")
    A("  v_mov_b32 v105, v6")
    A("  s_nop 0")
    A("  v_permlane16_swap_b32 v88, v9")
    A("  v_max_f32 v88, v88, v9")
    A("  ds_write_b32 v8, v88")
    A("  s_waitcnt lgkmcnt(0)")
    A("  s_barrier")
    A("  ds_read_b128 v[%d:%d], v95" % (S, S + 3))
    def sreads():
        for k in range(4):
            A("  ds_read_b128 v[%d:%d], v106 offset:%d" % (SA + 4 * k, SA + 3 + 4 * k, 512 * k))
        A("  v_add_u32 v106, 0x800, v106")
    def pcomp(Sx, Pd):
        for i in range(0, 8, 2):
            A("  v_pk_fma_f32 v[%d:%d], v[%d:%d], s[54:55], v[88:89] op_sel_hi:[1,1,0] neg_lo:[0,0,1] neg_hi:[0,0,1]" % (Sx + i, Sx + i + 1, Sx + i, Sx + i + 1))
        for i in range(8):
            A("  v_exp_f32 v%d, v%d" % (Sx + i, Sx + i))
        for m in range(4):
            A("  v_cvt_pk_bf16_f32 v%d, v%d, v%d" % (Pd + m, Sx + 2 * m, Sx + 1 + 2 * m))
    def lsum():
        A("  v_pk_add_f32 v[%d:%d], v[%d:%d], v[%d:%d]" % (SA, SA + 1, SA, SA + 1, SA + 2, SA + 3))
        A("  v_pk_add_f32 v[%d:%d], v[%d:%d], v[%d:%d]" % (SA + 4, SA + 5, SA + 4, SA + 5, SA + 6, SA + 7))
        A("  v_pk_add_f32 v[%d:%d], v[%d:%d], v[%d:%d]" % (SB, SB + 1, SB, SB + 1, SB + 2, SB + 3))
        A("  v_pk_add_f32 v[%d:%d], v[%d:%d], v[%d:%d]" % (SB + 4, SB + 5, SB + 4, SB + 5, SB + 6, SB + 7))
        A("  v_pk_add_f32 v[%d:%d], v[%d:%d], v[%d:%d]" % (SA, SA + 1, SA, SA + 1, SA + 4, SA + 5))
        A("  v_pk_add_f32 v[%d:%d], v[%d:%d], v[%d:%d]" % (SB, SB + 1, SB, SB + 1, SB + 4, SB + 5))
        A("  v_pk_add_f32 v[%d:%d], v[%d:%d], v[%d:%d]" % (SA, SA + 1, SA, SA + 1, SB, SB + 1))
        A("  v_add_f32 v89, v89, v%d" % SA)
        A("  v_add_f32 v89, v89, v%d" % (SA + 1))
    sreads()
    A("  s_waitcnt lgkmcnt(4)")
    A("  v_max3_f32 v88, v%d, v%d, v%d" % (S, S + 1, S + 2))
    A("  v_max_f32 v88, v88, v%d" % (S + 3))
    A("  s_waitcnt lgkmcnt(2)")
    pcomp(SA, PA)
    A("  s_waitcnt lgkmcnt(0)")
    pcomp(SB, PB)
    lsum()
    A("  s_branch L_vbody")
    def trreads(V, off):
        A("  ds_read_b64_tr_b16 v[%d:%d], v104 offset:%d" % (V, V + 1, off))
        A("  ds_read_b64_tr_b16 v[%d:%d], v104 offset:%d" % (V + 2, V + 3, off + 4096))
        A("  ds_read_b64_tr_b16 v[%d:%d], v105 offset:%d" % (V + 4, V + 5, off))
        A("  ds_read_b64_tr_b16 v[%d:%d], v105 offset:%d" % (V + 6, V + 7, off + 4096))
    def pv(V, Pr, n):
        A("  s_waitcnt lgkmcnt(%d)" % (n + 2))
        A("  v_mfma_f32_16x16x32_bf16 v[%d:%d], v[%d:%d], v[%d:%d], v[%d:%d]" % (ACC, ACC + 3, V, V + 3, Pr, Pr + 3, ACC, ACC + 3))
        A("  s_waitcnt lgkmcnt(%d)" % n)
        A("  v_mfma_f32_16x16x32_bf16 v[%d:%d], v[%d:%d], v[%d:%d], v[%d:%d]" % (ACC + 4, ACC + 7, V + 4, V + 7, Pr, Pr + 3, ACC + 4, ACC + 7))
    A("L_vloop:")
    A("  s_barrier")
    A("L_vbody:")
    trreads(VA, 0)
    trreads(VB, 0x2000)
    sreads()
    A("  s_add_u32 s52, s52, 0x4000")
    A("  s_and_b32 s52, s52, 0xffff")
    A("  s_add_u32 s47, s47, 1")
    A("  v_add_u32 v104, s52, v5")
    A("  v_add_u32 v105, s52, v6")
    pv(VA, PA, 8)
    pv(VB, PB, 4)
    A("  s_waitcnt lgkmcnt(2)")
    pcomp(SA, PA)
    A("  s_waitcnt lgkmcnt(0)")
    pcomp(SB, PB)
    lsum()
    A("  s_bitcmp1_b32 s58, s47")
    A("  s_cbranch_scc0 L_vloop")
    A("  s_cmp_eq_u32 s47, 31")
    A("  s_cbranch_scc1 L_final")
    A("L_events:")
    A("  s_cmp_eq_u32 s47, s44")
    A("  s_cbranch_scc0 L_not1")
    A("  s_waitcnt vmcnt(0)")
    A("  v_add_u32 v94, 1, v94")
    A("  v_max_u32 v94, 1, v94")
    A("  s_mov_b64 exec, 1")
    A("  buffer_store_dword v94, v92, s[24:27], 0 offen sc1")
    A("  s_mov_b64 exec, -1")
    A("L_not1:")
    A("  s_cmp_eq_u32 s47, s45")
    A("  s_cbranch_scc0 L_not2")
    A("  s_waitcnt vmcnt(0)")
    A("  s_mov_b64 exec, 1")
    if skew:
        A("  v_mov_b32 v9, s64")
        A("  buffer_store_dword v9, v92, s[36:39], 0 offen offset:4 sc1")
    A("  buffer_store_dword v94, v92, s[36:39], 0 offen sc1")
    A("  s_mov_b64 exec, -1")
    A("L_not2:")
    A("  s_cmp_eq_u32 s47, s29")
    A("  s_cbranch_scc0 L_notr1")
    A("  s_lshl_b32 s57, s22, 8")
    A("  s_add_u32 s4, s10, s57")
    A("  s_addc_u32 s5, s11, 0")
    A("  s_movk_i32 s6, 256")
    A("  s_mov_b32 s7, 0x20000")
    TK = [56, 60, 64, 68]
    for j in range(4):
        A("  buffer_load_dwordx4 v[%d:%d], v10, s[4:7], 0 offen offset:%d" % (TK[j], TK[j] + 3, 64 * j))
    A("  s_add_u32 s4, s12, s57")
    A("  s_addc_u32 s5, s13, 0")
    A("  s_lshr_b32 s57, s22, 2")
    A("  buffer_load_dwordx2 v[120:121], v11, s[4:7], 0 offen")
    A("  s_mov_b32 s4, s14")
    A("  s_mov_b32 s5, s15")
    A("  s_movk_i32 s6, 32")
    A("  s_lshl_b32 s57, s57, 1")
    A("  buffer_load_ushort v122, v92, s[4:7], s57 offen")
    if vtouch:
        A("  s_lshl_b32 s57, s22, 20")
        A("  s_add_u32 s4, s62v, s57".replace("s62v", "s32"))
        A("  s_addc_u32 s5, s33, 0")
        A("  s_mov_b32 s6, 0x100000")
        A("  s_lshl_b32 s57, s23, 18")
        A("  buffer_load_dword v123, v92, s[4:7], s57 offen nt")
    A("L_notr1:")
    A("  s_cmp_eq_u32 s47, s46")
    A("  s_cbranch_scc0 L_notr2")
    A("  s_waitcnt vmcnt(0)")
    for j in range(4):
        cc = "0" if j == 0 else "v[124:127]"
        A("  v_mfma_f32_16x16x32_bf16 v[124:127], v[%d:%d], v[%d:%d], %s" % (TK[j], TK[j] + 3, Q + 4 * j, Q + 3 + 4 * j, cc))
    A("  v_lshlrev_b32 v122, 16, v122")
    A("  v_sub_f32 v122, 1.0, v122")
    A("  v_mul_f32 v122, 0x%08x, v122" % f2u(-1e9 * math.log2(math.e)))
    A("  v_and_b32 v119, 0xffff0000, v120")
    A("  v_lshlrev_b32 v118, 16, v120")
    A("  v_lshlrev_b32 v120, 16, v121")
    A("  v_and_b32 v121, 0xffff0000, v121")
    A("  s_nop 1")
    A("  v_fma_f32 v122, v124, s53, v122")
    A("L_notr2:")
    A("  s_cmp_eq_u32 s47, %d" % chkit)
    A("  s_cbranch_scc0 L_nochk")
    A("  buffer_load_dword v90, v92, s[36:39], 0 offen sc1")
    A("L_nochk:")
    A("  s_cmp_eq_u32 s47, %d" % (chkit + 4))
    A("  s_cbranch_scc0 L_tagdone")
    A("  s_mov_b32 s57, 0x200000")
    A("L_tagspin:")
    A("  s_waitcnt vmcnt(0)")
    A("  v_readfirstlane_b32 s59, v90")
    A("  s_cmp_lg_u32 s59, 0")
    A("  s_cbranch_scc1 L_tagok")
    A("  buffer_load_dword v90, v92, s[36:39], 0 offen sc1")
    A("  s_sub_u32 s57, s57, 1")
    A("  s_cbranch_scc0 L_tagspin")
    A("L_tagok:")
    A("  s_cmp_lg_u32 s31, 0")
    A("  s_cbranch_scc1 L_tagdone")
    A("  v_mov_b32 v8, v90")
    A("  v_mov_b32 v9, s30")
    A("  s_mov_b64 exec, 1")
    A("  buffer_store_dwordx2 v[8:9], v92, s[24:27], s28 offen sc1")
    A("  s_mov_b64 exec, -1")
    A("L_tagdone:")
    A("  s_cmp_eq_u32 s47, %d" % xit)
    A("  s_cbranch_scc0 L_nox1")
    A("  buffer_load_dwordx2 v[100:101], v92, s[24:27], s28 offen sc1")
    A("L_nox1:")
    A("  s_cmp_eq_u32 s47, %d" % (xit + 3))
    A("  s_cbranch_scc0 L_nox2")
    A("  s_waitcnt vmcnt(0)")
    A("  v_readfirstlane_b32 s57, v100")
    A("  v_readfirstlane_b32 s56, v101")
    A("  s_xor_b32 s57, s57, s59")
    A("  s_xor_b32 s56, s56, s30")
    A("  s_or_b32 s57, s57, s56")
    A("  s_cbranch_scc1 L_nox2")
    A("  s_lshr_b32 s31, s31, 1")
    A("L_nox2:")
    A("  s_cmp_lt_u32 s47, 16")
    A("  s_cbranch_scc1 L_kloop")
    A("  s_branch L_vloop")
    A("L_final:")
    A("  v_mov_b32 v9, v89")
    A("  v_mov_b32 v108, v88")
    A("  v_mov_b32 v99, v90")
    A("  v_permlane32_swap_b32 v89, v9")
    A("  v_add_f32 v89, v89, v9")
    A("  v_mov_b32 v9, v89")
    A("  v_mov_b32 v110, v90")
    A("  s_mov_b32 s57, 0x200000")
    A("  v_permlane16_swap_b32 v89, v9")
    A("  v_add_f32 v109, v89, v9")
    def spoll():
        for k in range(3):
            A("  buffer_load_dwordx4 v[%d:%d], v0, s[48:51], s%d offen offset:1024 sc1" % (24 + 4 * k, 27 + 4 * k, 61 + k))
    def opoll():
        for k in range(3):
            A("  buffer_load_dwordx4 v[%d:%d], v91, s[48:51], s%d offen sc1" % (12 + 4 * k, 15 + 4 * k, 61 + k))
    def chk(a, b, c_, ok):
        A("  v_xor_b32 v8, v%d, v90" % a)
        A("  v_xor_b32 v9, v%d, v90" % b)
        A("  v_xor_b32 v10, v%d, v90" % c_)
        A("  v_or3_b32 v8, v8, v9, v10")
        A("  v_cmp_ne_u32 vcc, 0, v8")
        A("  s_cbranch_vccz %s" % ok)
    A("  s_cmp_eq_u32 s31, 1")
    A("  s_cbranch_scc0 L_fin2")
    A("  s_mov_b64 exec, 0xff")
    A("  buffer_store_dwordx4 v[108:111], v0, s[48:51], s60 offen offset:1024")
    A("  s_mov_b64 exec, -1")
    A("L_fin3:")
    A("  s_barrier")
    trreads(VA, 0)
    A("  s_mov_b32 s4, 0x07060501")
    A("  s_mov_b32 s5, 0x07060502")
    A("  s_mov_b32 s6, 0x07060503")
    A("  s_mov_b32 vcc_lo, 0xff00ff00")
    A("  s_mov_b32 vcc_hi, 0xff00ff00")
    A("  s_cmp_eq_u32 s31, 1")
    pv(VA, PA, 0)
    ST(6)
    A("  s_barrier")
    trreads(VB, 0x2000)
    pv(VB, PB, 0)
    A("  s_nop 7")
    for r, d in [(3, 111), (0, 96), (1, 97), (2, 98)]:
        A("  v_cndmask_b32 v%d, v%d, v%d, vcc" % (d, ACC + r, ACC + 4 + r))
    A("  s_cbranch_scc0 L_other")
    def pack():
        for r in range(3):
            A("  v_perm_b32 v%d, v%d, v111, s%d" % (96 + r, 96 + r, 4 + r))
    pack()
    A("  buffer_store_dwordx4 v[96:99], v91, s[48:51], s60 offen")
    ST(9)
    A("  s_branch L_end" if stamps else "  s_endpgm")
    A("L_other:")
    A("  s_cmp_eq_u32 s31, 0")
    A("  s_cbranch_scc1 L_consume")
    pack()
    A("  buffer_store_dwordx4 v[96:99], v91, s[48:51], s60 offen sc1")
    ST(9)
    A("  s_branch L_end" if stamps else "  s_endpgm")
    A("L_fin2:")
    A("  s_cmp_eq_u32 s31, 0")
    A("  s_cbranch_scc1 L_fin4")
    A("  s_mov_b64 exec, 0xff")
    A("  buffer_store_dwordx4 v[108:111], v0, s[48:51], s60 offen offset:1024 sc1")
    A("  s_mov_b64 exec, -1")
    A("  s_branch L_fin3")
    A("L_fin4:")
    spoll()
    opoll()
    A("  v_max_f32 v8, v108, v122")
    A("  v_sub_f32 v123, v108, v8")
    A("  v_sub_f32 v122, v122, v8")
    A("  v_exp_f32 v123, v123")
    A("  v_exp_f32 v122, v122")
    A("  v_mov_b32 v108, v8")
    A("  v_fma_f32 v109, v109, v123, v122")
    for r in range(4):
        A("  v_mul_f32 v%d, v122, v%d" % (118 + r, 118 + r))
    A("  s_branch L_fin3")
    A("L_consume:")
    for r, d in enumerate([96, 97, 98, 111]):
        A("  v_fma_f32 v%d, v%d, v123, v%d" % (96 + r, d, 118 + r))
    ST(9)
    A("  s_mov_b32 s4, 0x04000c0c")
    A("  s_mov_b32 s5, 0x0706000c")
    A("L_spoll:")
    A("  s_waitcnt vmcnt(0)")
    chk(26, 30, 34, "L_sok")
    spoll()
    A("  s_sub_u32 s57, s57, 1")
    A("  s_cbranch_scc0 L_spoll")
    A("  s_waitcnt vmcnt(0)")
    A("L_sok:")
    chk(15, 19, 23, "L_noo")
    opoll()
    A("L_noo:")
    A("  v_max3_f32 v8, v108, v24, v28")
    A("  v_max_f32 v8, v8, v32")
    A("  v_sub_f32 v108, v108, v8")
    for k in range(3):
        A("  v_sub_f32 v%d, v%d, v8" % (24 + 4 * k, 24 + 4 * k))
    A("  v_exp_f32 v108, v108")
    for k in range(3):
        A("  v_exp_f32 v%d, v%d" % (24 + 4 * k, 24 + 4 * k))
    A("  v_mul_f32 v109, v108, v109")
    for k in range(3):
        A("  v_fmac_f32 v109, v%d, v%d" % (24 + 4 * k, 25 + 4 * k))
    A("  v_rcp_f32 v109, v109")
    A("  s_mov_b32 s57, 0x200000")
    A("  v_mul_f32 v108, v108, v109")
    for k in range(3):
        A("  v_mul_f32 v%d, v%d, v109" % (24 + 4 * k, 24 + 4 * k))
    A("  v_pk_mul_f32 v[96:97], v[96:97], v[108:109] op_sel_hi:[1,0]")
    A("  v_pk_mul_f32 v[98:99], v[98:99], v[108:109] op_sel_hi:[1,0]")
    A("L_opoll:")
    A("  s_waitcnt vmcnt(0)")
    chk(15, 19, 23, "L_ook")
    opoll()
    A("  s_sub_u32 s57, s57, 1")
    A("  s_cbranch_scc0 L_opoll")
    A("  s_waitcnt vmcnt(0)")
    A("L_ook:")
    ST(10)
    for k in range(3):
        b = 12 + 4 * k
        A("  v_perm_b32 v%d, v%d, v%d, s4" % (b + 3, b + 2, b + 1))
    for k in range(3):
        b = 12 + 4 * k
        A("  v_pk_fma_f32 v[96:97], v[%d:%d], v[%d:%d], v[96:97] op_sel_hi:[1,0,1]" % (b, b + 1, 24 + 4 * k, 25 + 4 * k))
        A("  v_perm_b32 v%d, v%d, v%d, s5" % (b + 3, b + 3, b))
    for k in range(3):
        b = 12 + 4 * k
        A("  v_pk_fma_f32 v[98:99], v[%d:%d], v[%d:%d], v[98:99] op_sel_hi:[1,0,1]" % (b + 2, b + 3, 24 + 4 * k, 25 + 4 * k))
    A("  v_cvt_pk_bf16_f32 v96, v96, v97")
    A("  v_cvt_pk_bf16_f32 v97, v98, v99")
    A("  buffer_store_dwordx2 v[96:97], v93, s[40:43], 0 offen")
    if stamps:
        A("L_end:")
        A("  s_waitcnt vmcnt(0)")
        ST(11)
        if da >= 0:
            if skew:
                A("  s_cmp_eq_u32 s72, 0")
                A("  s_cbranch_scc1 L_exit")
                A("  buffer_load_dword v9, v92, s[36:39], 0 offen offset:4 sc1")
                A("  s_waitcnt vmcnt(0)")
                A("  v_readfirstlane_b32 s57, v9")
                if skew == 1:
                    A("  s_sub_u32 s56, s%d, s57" % (64 + 2 * db))
                else:
                    A("  s_sub_u32 s56, s57, s%d" % (64 + 2 * db))
                A("  s_max_i32 s56, s56, 0")
                A("  s_add_u32 s%d, s%d, s56" % (64 + 2 * 8, 64 + 2 * da))
                db = 8
            A("  s_cmp_eq_u32 s%d, 0" % (64 + 2 * da))
            A("  s_cbranch_scc1 L_exit")
            A("  s_cmp_eq_u32 s%d, 0" % (64 + 2 * db))
            A("  s_cbranch_scc1 L_exit")
            A("  s_sub_u32 s56, s%d, s%d" % (64 + 2 * db, 64 + 2 * da))
            A("  s_min_u32 s56, s56, 5000")
            A("  s_mul_i32 s56, s56, %d" % dk)
            A("L_dspin:")
            A("  s_memrealtime s[58:59]")
            A("  s_waitcnt lgkmcnt(0)")
            A("  s_sub_u32 s57, s58, s86")
            A("  s_cmp_lt_u32 s57, s56")
            A("  s_cbranch_scc1 L_dspin")
        else:
            A("  s_add_u32 s24, s20, 0x8000000")
            A("  s_addc_u32 s25, s21, 0")
            A("  s_mov_b32 s26, 0x100000")
            A("  s_mov_b32 s27, 0x20000")
            A("  s_getreg_b32 s58, hwreg(HW_REG_HW_ID)")
            A("  s_mul_i32 s56, s2, %d" % W)
            A("  v_readfirstlane_b32 s57, v128")
            A("  s_add_u32 s56, s56, s57")
            A("  s_lshl_b32 s56, s56, 7")
            A("  s_mov_b64 exec, 1")
            A("  v_mov_b32 v1, 0")
            for i in range(12):
                A("  v_mov_b32 v2, s%d" % (64 + 2 * i))
                A("  v_mov_b32 v3, s%d" % (65 + 2 * i))
                A("  buffer_store_dwordx2 v[2:3], v1, s[24:27], s56 offen offset:%d" % (8 * i))
                A("  s_nop 1")
            A("  s_getreg_b32 s57, hwreg(HW_REG_XCC_ID)")
            A("  v_mov_b32 v2, s57")
            A("  v_mov_b32 v3, s58")
            A("  buffer_store_dwordx2 v[2:3], v1, s[24:27], s56 offen offset:120")
    A("L_exit:")
    A("  s_endpgm")
    footer(L, 136 if stamps else 128, 96 if stamps else 64)
    s = "\n".join(L) + "\n"
    if stamps:
        s = s.replace("  v_and_b32 v0, 63, v0\n", "  v_and_b32 v0, 63, v0\n  v_mov_b32 v128, v1\n", 1)
    return s

if __name__ == "__main__":
    for a in sys.argv[1:]:
        name, _, kv = a.partition(":")
        kw = {}
        for x in kv.split(","):
            if not x: continue
            k, v = x.split("=")
            kw[k] = int(v)
        open(name, "w").write(gen(**kw))
```

```python
import sys, math, struct
NAME = "standalone__tree_speculative_verify_tree_attention_over_candidate_token_tree__sampling"
f2u = lambda f: struct.unpack("<I", struct.pack("<f", f))[0]

def gen(N=21, it1=3, it2=6, trit=7, chkit=10, xit=19):
    L = []
    def A(x, c=None):
        L.append(x if c is None else "%-72s ; %s" % (x, c))
    def C(x=""):
        L.append("  ; " + x)
    SL = 65536
    QL = SL + 24576
    MT = SL + 32768
    for h in open("cdna_kernels/%s.s.ref" % NAME).read().split("\n"):
        if h.startswith("; @launch") or h.startswith("; Override") or h.startswith("; grid=ceil"):
            continue
        if not h.startswith(";"):
            break
        L.append(h)
    L.append("; @launch grid=(256,1,1) block=(320,1,1) lds=%d" % (MT + 256))
    for x in """
 Split-K decode attention. Workgroup = (pair = b*4+hkv, split): 1024 cached keys, all 8 query heads.
 The kernel is HBM bound (128 MiB of K/V read once), so one wave only moves data:
   wave 0     : LDS-DMA of K (first pass) then V (second pass) into a 4 x 16KB ring, at most N loads in flight
   waves 1..4 : K pass: wave w scores one 16-key unit per group (MFMA), raw scores go to LDS, running max in a VGPR
                V pass: P = exp2(c*S - M) with the exact max M of the workgroup's keys, O^T += V^T P^T for d-quarter w
 The 4 splits of a pair are merged in the same launch: wave w of split s sends its d-quarter (O, m, l) to
 workgroup split w, whose wave w also adds the tree token (with its mask) and writes the output.
 Hand-off records in d_ws carry a launch tag: workgroup 0 takes (word left in d_ws) + 1, stores it back and
 posts it in d_debug; a record counts only when every 16-byte piece holds that tag. Writers use plain stores
 when the reader has announced the same XCC id, write-through (sc1) stores otherwise; readers load with sc1.
 d_ws: records [pair][dest][src] 2KB each at 0, tag word at 2MiB, {tag, xcc} words at 2MiB+64KB.""".split("\n"):
        L.append(";" + x)
    A('.amdgcn_target "amdgcn-amd-amdhsa--gfx950"')
    A(".text")
    A(".globl %s_kernel" % NAME)
    A(".p2align 8")
    A(".type %s_kernel,@function" % NAME)
    A("%s_kernel:" % NAME)
    A("  s_load_dwordx16 s[4:19], s[0:1], 0", "q k v k_tree v_tree mask out debug")
    A("  s_load_dwordx2 s[20:21], s[0:1], 64", "ws")
    A("  s_cmp_ge_u32 s2, 256")
    A("  s_cbranch_scc1 L_exit")
    A("  v_lshrrev_b32 v1, 6, v0")
    A("  v_and_b32 v0, 63, v0")
    A("  v_readfirstlane_b32 s3, v1", "wave")
    A("  s_and_b32 s22, s2, 7")
    A("  s_lshr_b32 s23, s2, 5")
    A("  s_lshl3_add_u32 s22, s22, s23", "pair  = (id&7)*8 + (id>>5)")
    A("  s_bfe_u32 s23, s2, 0x20003", "split = (id>>3)&3")
    A("  v_lshrrev_b32 v8, 4, v0", "lane>>4")
    A("  v_and_b32 v9, 15, v0", "lane&15")
    A("  s_cmp_lg_u32 s3, 0")
    A("  s_cbranch_scc1 L_cons")
    C("================================================ loader wave")
    A("  s_setprio 3")
    A("  v_xor_b32 v1, v9, v8")
    A("  v_lshlrev_b32 v1, 4, v1")
    A("  v_lshl_add_u32 v1, v8, 8, v1", "K source offsets: 16B chunks of a row xor-swizzled by (row&15)")
    A("  v_xor_b32 v2, 64, v1")
    A("  v_xor_b32 v3, 0x80, v1")
    A("  v_xor_b32 v4, 0xc0, v1")
    A("  s_lshl_b32 s56, s22, 20")
    A("  s_lshl_b32 s46, s23, 18")
    A("  s_mov_b32 s45, s46")
    A("  s_mov_b32 s26, 0x100000")
    A("  s_mov_b32 s27, 0x20000")
    A("  s_mov_b32 m0, 0")
    A("  v_lshlrev_b32 v5, 1, v8")
    A("  v_xor_b32 v5, v9, v5")
    A("  v_lshlrev_b32 v5, 4, v5")
    A("  v_lshl_add_u32 v5, v8, 8, v5", "V source offsets: chunks xor-swizzled by (row&7)<<1")
    A("  v_xor_b32 v6, 0x80, v5")
    A("  s_mov_b32 s44, 0", "group (4 units of 16 keys = 16KB)")
    A("  s_waitcnt lgkmcnt(0)")
    A("  s_add_u32 s24, s6, s56")
    A("  s_addc_u32 s25, s7, 0")
    p = N - 1 - 16
    assert 0 <= p < 16
    def group(kind):
        for u in range(4):
            for i in range(4):
                A("  s_waitcnt vmcnt(%d)" % (N - 1))
                if 4 * u + i == p:
                    if kind == "k":
                        A("  s_cmp_lt_u32 s44, 2")
                        A("  s_cbranch_scc1 L_nobar")
                    A("  s_barrier", "group s44-2 has landed")
                    if kind == "k":
                        A("L_nobar:")
                A("  buffer_load_dwordx4 v%d, s[24:27], s46 offen offset:%d nt lds" % ((1 + i) if kind == "k" else (5 + (i & 1)), 1024 * i))
            if u < 3:
                A("  s_xor_b32 s46, s46, 0x%x" % [0x2000, 0x3000, 0x2000][u])
            A("  s_add_u32 m0, m0, 0x1000")
        A("  s_and_b32 m0, m0, 0xffff")
        A("  s_add_u32 s44, s44, 1")
        C("4KB units are walked with index bits -> address bits 13,12,16,15,14,17 (spreads HBM stacks and banks)")
        A("  s_brev_b32 s47, s44")
        A("  s_lshr_b32 s47, s47, 15")
        A("  s_and_b32 s47, s47, 0x1c000")
        A("  s_and_b32 s48, s44, 8")
        A("  s_lshl_b32 s48, s48, 14")
        A("  s_or_b32 s46, s45, s47")
        A("  s_or_b32 s46, s46, s48")
    A("L_lk:")
    group("k")
    A("  s_cmp_lt_u32 s44, 16")
    A("  s_cbranch_scc1 L_lk")
    A("  s_add_u32 s24, s8, s56")
    A("  s_addc_u32 s25, s9, 0")
    A("L_lv:")
    group("v")
    A("  s_cmp_lt_u32 s44, 32")
    A("  s_cbranch_scc1 L_lv")
    A("  s_waitcnt vmcnt(16)")
    A("  s_barrier", "group 30")
    A("  s_waitcnt vmcnt(8)")
    A("  s_barrier", "first tile of group 31")
    A("  s_waitcnt vmcnt(0)")
    A("  s_barrier", "last tile")
    A("  s_endpgm")
    C("================================================ consumer waves")
    A("L_cons:")
    Q, S, PA, KF, SA, SB, VB, VA, ACC, PB = 12, 28, 36, 40, 40, 48, 64, 72, 80, 112
    A("  s_sub_u32 s3, s3, 1", "w")
    A("  v_lshlrev_b32 v91, 4, v0", "lane*16")
    A("  s_lshl_b32 s59, s3, 11")
    A("  s_add_u32 s59, s59, %d" % QL, "this wave's copy of Q in LDS")
    A("  s_lshl_b32 s57, s22, 11")
    A("  s_movk_i32 s34, 2048")
    A("  s_mov_b32 s35, 0x20000")
    A("  s_mov_b32 m0, s59")
    A("  v_xor_b32 v1, v8, v9")
    A("  v_lshlrev_b32 v1, 4, v1")
    A("  v_lshl_add_u32 v1, v9, 8, v1")
    A("  s_lshl_b32 s56, s3, 12")
    A("  v_add_u32 v1, s56, v1", "v1..v4: K fragment addresses (unit w of the group)")
    A("  v_xor_b32 v2, 64, v1")
    A("  v_xor_b32 v3, 0x80, v1")
    A("  v_xor_b32 v4, 0xc0, v1")
    A("  v_bfe_u32 v5, v0, 2, 4")
    A("  v_and_b32 v6, 7, v5")
    A("  v_lshlrev_b32 v6, 1, v6")
    A("  v_bfe_u32 v7, v0, 1, 1")
    A("  s_lshl_b32 s56, s3, 2")
    A("  v_add_u32 v7, s56, v7")
    A("  v_xor_b32 v6, v6, v7")
    A("  v_lshlrev_b32 v6, 4, v6")
    A("  v_lshl_add_u32 v5, v5, 8, v6")
    A("  v_and_b32 v6, 1, v0")
    A("  v_lshl_add_u32 v5, v6, 3, v5", "v5, v6: transposing V reads, d = 32w + 0..15 / 16..31")
    A("  v_xor_b32 v6, 32, v5")
    A("  v_and_b32 v7, 7, v0")
    A("  v_lshlrev_b32 v7, 8, v7", "head*256 (MFMA columns 8..15 repeat heads 0..7)")
    A("  v_lshlrev_b32 v10, 4, v8")
    A("  v_lshlrev_b32 v11, 3, v8")
    A("  s_lshl_b32 s56, s3, 6")
    A("  v_add_u32 v11, s56, v11")
    A("  v_bfe_u32 v93, v0, 3, 1")
    A("  v_lshl_add_u32 v11, v93, 5, v11", "byte offset of this lane's 4 d values")
    A("  v_add_u32 v93, v11, v7", "output offset")
    A("  v_add3_u32 v7, v7, v10, s59", "Q fragment address")
    A("  v_and_b32 v0, 0x70, v91", "head*16: offset of the (m, l) piece")
    A("  v_lshl_add_u32 v106, v8, 7, v0")
    A("  v_add_u32 v106, %d, v106" % SL, "score read address")
    A("  s_lshl_b32 s56, s3, 9")
    A("  v_add_u32 v107, s56, v106", "score write address")
    A("  v_lshlrev_b32 v95, 4, v9")
    A("  v_add_u32 v95, %d, v95" % MT, "max table row")
    c = (128 ** -0.5) * math.log2(math.e)
    A("  s_mov_b32 s53, 0x%08x" % f2u(c), "c = log2(e)/sqrt(128)")
    A("  s_mov_b32 s54, s53")
    A("  s_mov_b32 s55, s53")
    A("  v_mov_b32 v88, 0xff800000", "m")
    A("  v_mov_b32 v89, 0", "l")
    for i in range(4):
        A("  v_mov_b64 v[%d:%d], 0" % (ACC + 2 * i, ACC + 2 * i + 1))
    A("  v_mov_b32 v90, 0")
    A("  v_mov_b32 v92, 0")
    A("  s_waitcnt lgkmcnt(0)")
    A("  s_add_u32 s32, s4, s57")
    A("  s_addc_u32 s33, s5, 0")
    A("  buffer_load_dwordx4 v91, s[32:35], 0 offen lds")
    A("  buffer_load_dwordx4 v91, s[32:35], 0 offen offset:1024 lds")
    C("descriptors: records s[48:51], debug s[36:39], out s[40:43], tag word + xcc words s[24:27]")
    A("  s_lshl_b32 s56, s22, 15")
    A("  s_add_u32 s48, s20, s56")
    A("  s_addc_u32 s49, s21, 0")
    A("  s_mov_b32 s50, 0x8000")
    A("  s_mov_b32 s51, 0x20000")
    A("  s_mov_b32 s36, s18")
    A("  s_mov_b32 s37, s19")
    A("  s_movk_i32 s38, 256")
    A("  s_mov_b32 s39, 0x20000")
    A("  s_lshl_b32 s56, s22, 11")
    A("  s_add_u32 s40, s16, s56")
    A("  s_addc_u32 s41, s17, 0")
    A("  s_movk_i32 s42, 2048")
    A("  s_mov_b32 s43, 0x20000")
    A("  s_lshl_b32 s57, s3, 13")
    A("  s_lshl_b32 s56, s23, 11")
    A("  s_add_u32 s60, s56, s57", "outgoing record: dest = w, src = split")
    A("  s_lshl_b32 s57, s23, 13")
    for k in range(1, 4):
        A("  s_add_u32 s56, s23, %d" % k)
        A("  s_and_b32 s56, s56, 3")
        A("  s_lshl_b32 s56, s56, 11")
        A("  s_add_u32 s%d, s56, s57" % (60 + k), "incoming record %d" % k)
    A("  s_add_u32 s24, s20, 0x200000")
    A("  s_addc_u32 s25, s21, 0")
    A("  s_mov_b32 s26, 0x20000")
    A("  s_mov_b32 s27, 0x20000")
    A("  s_lshl_b32 s28, s22, 8")
    A("  s_lshl3_add_u32 s28, s3, s28")
    A("  s_add_u32 s28, s28, 0x10000", "{tag, xcc} word of workgroup (pair, w)")
    A("  s_getreg_b32 s30, hwreg(HW_REG_XCC_ID, 0, 4)")
    A("  s_cmp_eq_u32 s3, s23")
    A("  s_cselect_b32 s31, 0, 2", "role: 0 reader, 2 writer (write-through), 1 writer (reader on this XCD)")
    A("  s_cselect_b32 s29, %d, -1" % trit, "the reader wave also scores the tree token")
    A("  s_cselect_b32 s46, %d, -1" % (trit + 3))
    A("  s_xor_b32 s56, s3, 3")
    A("  s_or_b32 s56, s56, s2")
    A("  s_cselect_b32 s44, -1, %d" % it1, "wave w=3 of workgroup 0 makes the launch tag")
    A("  s_cselect_b32 s45, -1, %d" % it2)
    A("  s_cbranch_scc1 L_notag0")
    A("  buffer_load_dword v94, v92, s[24:27], 0 offen sc1")
    A("L_notag0:")
    ev = [it1, it2, trit, trit + 3, chkit, chkit + 4, 16, xit, xit + 3, 31]
    assert trit + 3 < 16 and it2 < chkit and chkit + 4 < xit
    A("  s_mov_b32 s58, 0x%x" % sum(1 << e for e in set(ev)), "phases followed by extra work")
    A("  s_mov_b32 s47, 0", "phase")
    A("  s_mov_b32 s52, 0", "ring slot")
    A("  s_mov_b32 s8, 0x00ff00ff")
    A("  s_mov_b32 s9, 0x00ff00ff")
    A("  s_barrier")
    for j in range(4):
        A("  ds_read_b128 v[%d:%d], v%d" % (KF + 4 * j, KF + 3 + 4 * j, 1 + j))
    A("  s_waitcnt vmcnt(0)")
    for j in range(4):
        A("  ds_read_b128 v[%d:%d], v7 offset:%d" % (Q + 4 * j, Q + 3 + 4 * j, 64 * j))
    A("  s_waitcnt lgkmcnt(0)")
    A("  s_branch L_kq")
    C("---------------- K pass")
    A("L_kloop:")
    A("  s_barrier")
    for j in range(4):
        A("  ds_read_b128 v[%d:%d], v%d" % (KF + 4 * j, KF + 3 + 4 * j, 100 + j))
    A("L_kq:")
    for j in range(4):
        cc = "0" if j == 0 else "v[%d:%d]" % (S, S + 3)
        A("  s_waitcnt lgkmcnt(%d)" % (3 - j))
        A("  v_mfma_f32_16x16x32_bf16 v[%d:%d], v[%d:%d], v[%d:%d], %s" % (S, S + 3, KF + 4 * j, KF + 3 + 4 * j, Q + 4 * j, Q + 3 + 4 * j, cc))
    A("  s_add_u32 s52, s52, 0x4000")
    A("  s_and_b32 s52, s52, 0xffff")
    A("  s_add_u32 s47, s47, 1")
    for k in range(4):
        A("  v_add_u32 v%d, s52, v%d" % (100 + k, 1 + k))
    A("  s_mov_b64 exec, s[8:9]")
    A("  ds_write_b128 v107, v[%d:%d]" % (S, S + 3))
    A("  s_mov_b64 exec, -1")
    A("  v_max3_f32 v88, v88, v%d, v%d" % (S, S + 1))
    A("  v_max3_f32 v88, v88, v%d, v%d" % (S + 2, S + 3))
    A("  v_add_u32 v107, 0x800, v107")
    A("  s_bitcmp1_b32 s58, s47")
    A("  s_cbranch_scc0 L_kloop")
    A("  s_cmp_eq_u32 s47, 16")
    A("  s_cbranch_scc0 L_events")
    C("---------------- between the passes: exact row max over this workgroup's keys")
    A("  v_mul_f32 v88, s53, v88")
    A("  s_lshl_b32 s56, s3, 2")
    A("  v_mov_b32 v9, v88")
    A("  v_add_u32 v8, s56, v95")
    A("  v_mov_b32 v104, v5")
    A("  v_permlane32_swap_b32 v88, v9")
    A("  v_max_f32 v88, v88, v9")
    A("  v_mov_b32 v9, v88")
    A("  v_mov_b32 v105, v6")
    A("  s_nop 0")
    A("  v_permlane16_swap_b32 v88, v9")
    A("  v_max_f32 v88, v88, v9")
    A("  ds_write_b32 v8, v88")
    A("  s_waitcnt lgkmcnt(0)")
    A("  s_barrier")
    A("  ds_read_b128 v[%d:%d], v95" % (S, S + 3))
    def sreads():
        for k in range(4):
            A("  ds_read_b128 v[%d:%d], v106 offset:%d" % (SA + 4 * k, SA + 3 + 4 * k, 512 * k))
        A("  v_add_u32 v106, 0x800, v106")
    def pcomp(Sx, Pd):
        for i in range(0, 8, 2):
            A("  v_pk_fma_f32 v[%d:%d], v[%d:%d], s[54:55], v[88:89] op_sel_hi:[1,1,0] neg_lo:[0,0,1] neg_hi:[0,0,1]" % (Sx + i, Sx + i + 1, Sx + i, Sx + i + 1))
        for i in range(8):
            A("  v_exp_f32 v%d, v%d" % (Sx + i, Sx + i))
        for m in range(4):
            A("  v_cvt_pk_bf16_f32 v%d, v%d, v%d" % (Pd + m, Sx + 2 * m, Sx + 1 + 2 * m))
    def lsum():
        A("  v_pk_add_f32 v[%d:%d], v[%d:%d], v[%d:%d]" % (SA, SA + 1, SA, SA + 1, SA + 2, SA + 3))
        A("  v_pk_add_f32 v[%d:%d], v[%d:%d], v[%d:%d]" % (SA + 4, SA + 5, SA + 4, SA + 5, SA + 6, SA + 7))
        A("  v_pk_add_f32 v[%d:%d], v[%d:%d], v[%d:%d]" % (SB, SB + 1, SB, SB + 1, SB + 2, SB + 3))
        A("  v_pk_add_f32 v[%d:%d], v[%d:%d], v[%d:%d]" % (SB + 4, SB + 5, SB + 4, SB + 5, SB + 6, SB + 7))
        A("  v_pk_add_f32 v[%d:%d], v[%d:%d], v[%d:%d]" % (SA, SA + 1, SA, SA + 1, SA + 4, SA + 5))
        A("  v_pk_add_f32 v[%d:%d], v[%d:%d], v[%d:%d]" % (SB, SB + 1, SB, SB + 1, SB + 4, SB + 5))
        A("  v_pk_add_f32 v[%d:%d], v[%d:%d], v[%d:%d]" % (SA, SA + 1, SA, SA + 1, SB, SB + 1))
        A("  v_add_f32 v89, v89, v%d" % SA)
        A("  v_add_f32 v89, v89, v%d" % (SA + 1))
    sreads()
    A("  s_waitcnt lgkmcnt(4)")
    A("  v_max3_f32 v88, v%d, v%d, v%d" % (S, S + 1, S + 2))
    A("  v_max_f32 v88, v88, v%d" % (S + 3), "M")
    A("  s_waitcnt lgkmcnt(2)")
    pcomp(SA, PA)
    A("  s_waitcnt lgkmcnt(0)")
    pcomp(SB, PB)
    lsum()
    A("  s_branch L_vbody")
    def trreads(V, off):
        A("  ds_read_b64_tr_b16 v[%d:%d], v104 offset:%d" % (V, V + 1, off))
        A("  ds_read_b64_tr_b16 v[%d:%d], v104 offset:%d" % (V + 2, V + 3, off + 4096))
        A("  ds_read_b64_tr_b16 v[%d:%d], v105 offset:%d" % (V + 4, V + 5, off))
        A("  ds_read_b64_tr_b16 v[%d:%d], v105 offset:%d" % (V + 6, V + 7, off + 4096))
    def pv(V, Pr, n):
        A("  s_waitcnt lgkmcnt(%d)" % (n + 2))
        A("  v_mfma_f32_16x16x32_bf16 v[%d:%d], v[%d:%d], v[%d:%d], v[%d:%d]" % (ACC, ACC + 3, V, V + 3, Pr, Pr + 3, ACC, ACC + 3))
        A("  s_waitcnt lgkmcnt(%d)" % n)
        A("  v_mfma_f32_16x16x32_bf16 v[%d:%d], v[%d:%d], v[%d:%d], v[%d:%d]" % (ACC + 4, ACC + 7, V + 4, V + 7, Pr, Pr + 3, ACC + 4, ACC + 7))
    C("---------------- V pass: PV of the two tiles that landed, P of the next two")
    A("L_vloop:")
    A("  s_barrier")
    A("L_vbody:")
    trreads(VA, 0)
    trreads(VB, 0x2000)
    sreads()
    A("  s_add_u32 s52, s52, 0x4000")
    A("  s_and_b32 s52, s52, 0xffff")
    A("  s_add_u32 s47, s47, 1")
    A("  v_add_u32 v104, s52, v5")
    A("  v_add_u32 v105, s52, v6")
    pv(VA, PA, 8)
    pv(VB, PB, 4)
    A("  s_waitcnt lgkmcnt(2)")
    pcomp(SA, PA)
    A("  s_waitcnt lgkmcnt(0)")
    pcomp(SB, PB)
    lsum()
    A("  s_bitcmp1_b32 s58, s47")
    A("  s_cbranch_scc0 L_vloop")
    A("  s_cmp_eq_u32 s47, 31")
    A("  s_cbranch_scc1 L_final")
    C("---------------- work of a few phases only: launch tag, tree token, XCC announcement")
    A("L_events:")
    A("  s_cmp_eq_u32 s47, s44")
    A("  s_cbranch_scc0 L_not1")
    A("  s_waitcnt vmcnt(0)")
    A("  v_add_u32 v94, 1, v94")
    A("  v_max_u32 v94, 1, v94")
    A("  s_mov_b64 exec, 1")
    A("  buffer_store_dword v94, v92, s[24:27], 0 offen sc1")
    A("  s_mov_b64 exec, -1")
    A("L_not1:")
    A("  s_cmp_eq_u32 s47, s45")
    A("  s_cbranch_scc0 L_not2")
    A("  s_waitcnt vmcnt(0)")
    A("  s_mov_b64 exec, 1")
    A("  buffer_store_dword v94, v92, s[36:39], 0 offen sc1")
    A("  s_mov_b64 exec, -1")
    A("L_not2:")
    A("  s_cmp_eq_u32 s47, s29")
    A("  s_cbranch_scc0 L_notr1")
    A("  s_lshl_b32 s57, s22, 8")
    A("  s_add_u32 s4, s10, s57")
    A("  s_addc_u32 s5, s11, 0")
    A("  s_movk_i32 s6, 256")
    A("  s_mov_b32 s7, 0x20000")
    TK = [56, 60, 64, 68]
    for j in range(4):
        A("  buffer_load_dwordx4 v[%d:%d], v10, s[4:7], 0 offen offset:%d" % (TK[j], TK[j] + 3, 64 * j), "k_tree in every row" if j == 0 else None)
    A("  s_add_u32 s4, s12, s57")
    A("  s_addc_u32 s5, s13, 0")
    A("  s_lshr_b32 s57, s22, 2")
    A("  buffer_load_dwordx2 v[120:121], v11, s[4:7], 0 offen", "v_tree")
    A("  s_mov_b32 s4, s14")
    A("  s_mov_b32 s5, s15")
    A("  s_movk_i32 s6, 32")
    A("  s_lshl_b32 s57, s57, 1")
    A("  buffer_load_ushort v122, v92, s[4:7], s57 offen", "tree_mask[b]")
    A("L_notr1:")
    A("  s_cmp_eq_u32 s47, s46")
    A("  s_cbranch_scc0 L_notr2")
    A("  s_waitcnt vmcnt(0)")
    for j in range(4):
        cc = "0" if j == 0 else "v[124:127]"
        A("  v_mfma_f32_16x16x32_bf16 v[124:127], v[%d:%d], v[%d:%d], %s" % (TK[j], TK[j] + 3, Q + 4 * j, Q + 3 + 4 * j, cc))
    A("  v_lshlrev_b32 v122, 16, v122")
    A("  v_sub_f32 v122, 1.0, v122")
    A("  v_mul_f32 v122, 0x%08x, v122" % f2u(-1e9 * math.log2(math.e)), "(1 - mask) * -1e9 * log2(e)")
    A("  v_and_b32 v119, 0xffff0000, v120")
    A("  v_lshlrev_b32 v118, 16, v120")
    A("  v_lshlrev_b32 v120, 16, v121")
    A("  v_and_b32 v121, 0xffff0000, v121")
    A("  s_nop 1")
    A("  v_fma_f32 v122, v124, s53, v122", "score of the tree token")
    A("L_notr2:")
    A("  s_cmp_eq_u32 s47, %d" % chkit)
    A("  s_cbranch_scc0 L_nochk")
    A("  buffer_load_dword v90, v92, s[36:39], 0 offen sc1", "launch tag")
    A("L_nochk:")
    A("  s_cmp_eq_u32 s47, %d" % (chkit + 4))
    A("  s_cbranch_scc0 L_tagdone")
    A("  s_mov_b32 s57, 0x200000")
    A("L_tagspin:")
    A("  s_waitcnt vmcnt(0)")
    A("  v_readfirstlane_b32 s59, v90")
    A("  s_cmp_lg_u32 s59, 0")
    A("  s_cbranch_scc1 L_tagok")
    A("  buffer_load_dword v90, v92, s[36:39], 0 offen sc1")
    A("  s_sub_u32 s57, s57, 1")
    A("  s_cbranch_scc0 L_tagspin")
    A("L_tagok:")
    A("  s_cmp_lg_u32 s31, 0")
    A("  s_cbranch_scc1 L_tagdone")
    A("  v_mov_b32 v8, v90")
    A("  v_mov_b32 v9, s30")
    A("  s_mov_b64 exec, 1")
    A("  buffer_store_dwordx2 v[8:9], v92, s[24:27], s28 offen sc1", "the reader announces its XCC")
    A("  s_mov_b64 exec, -1")
    A("L_tagdone:")
    A("  s_cmp_eq_u32 s47, %d" % xit)
    A("  s_cbranch_scc0 L_nox1")
    A("  buffer_load_dwordx2 v[100:101], v92, s[24:27], s28 offen sc1")
    A("L_nox1:")
    A("  s_cmp_eq_u32 s47, %d" % (xit + 3))
    A("  s_cbranch_scc0 L_nox2")
    A("  s_waitcnt vmcnt(0)")
    A("  v_readfirstlane_b32 s57, v100")
    A("  v_readfirstlane_b32 s56, v101")
    A("  s_xor_b32 s57, s57, s59")
    A("  s_xor_b32 s56, s56, s30")
    A("  s_or_b32 s57, s57, s56")
    A("  s_cbranch_scc1 L_nox2")
    A("  s_lshr_b32 s31, s31, 1", "announced in this launch and same XCC: role 2 -> 1")
    A("L_nox2:")
    A("  s_cmp_lt_u32 s47, 16")
    A("  s_cbranch_scc1 L_kloop")
    A("  s_branch L_vloop")
    C("---------------- last group and merge of the four splits")
    C("record: per lane v[96:99] = {o0, o1, o2, tag} (low bytes of o0..o2 carry the top 3 bytes of o3),")
    C("        per head v[108:111] = {m, l, tag, -}")
    A("L_final:")
    A("  v_mov_b32 v9, v89")
    A("  v_mov_b32 v108, v88")
    A("  v_mov_b32 v99, v90")
    A("  v_permlane32_swap_b32 v89, v9")
    A("  v_add_f32 v89, v89, v9")
    A("  v_mov_b32 v9, v89")
    A("  v_mov_b32 v110, v90")
    A("  s_mov_b32 s57, 0x200000")
    A("  v_permlane16_swap_b32 v89, v9")
    A("  v_add_f32 v109, v89, v9")
    def spoll():
        for k in range(3):
            A("  buffer_load_dwordx4 v[%d:%d], v0, s[48:51], s%d offen offset:1024 sc1" % (24 + 4 * k, 27 + 4 * k, 61 + k))
    def opoll():
        for k in range(3):
            A("  buffer_load_dwordx4 v[%d:%d], v91, s[48:51], s%d offen sc1" % (12 + 4 * k, 15 + 4 * k, 61 + k))
    def chk(a, b, c_, ok):
        A("  v_xor_b32 v8, v%d, v90" % a)
        A("  v_xor_b32 v9, v%d, v90" % b)
        A("  v_xor_b32 v10, v%d, v90" % c_)
        A("  v_or3_b32 v8, v8, v9, v10")
        A("  v_cmp_ne_u32 vcc, 0, v8")
        A("  s_cbranch_vccz %s" % ok)
    A("  s_cmp_eq_u32 s31, 1")
    A("  s_cbranch_scc0 L_fin2")
    A("  s_mov_b64 exec, 0xff")
    A("  buffer_store_dwordx4 v[108:111], v0, s[48:51], s60 offen offset:1024")
    A("  s_mov_b64 exec, -1")
    A("L_fin3:")
    A("  s_barrier")
    trreads(VA, 0)
    A("  s_mov_b32 s4, 0x07060501")
    A("  s_mov_b32 s5, 0x07060502")
    A("  s_mov_b32 s6, 0x07060503")
    A("  s_mov_b32 vcc_lo, 0xff00ff00")
    A("  s_mov_b32 vcc_hi, 0xff00ff00")
    A("  s_cmp_eq_u32 s31, 1")
    pv(VA, PA, 0)
    A("  s_barrier")
    trreads(VB, 0x2000)
    pv(VB, PB, 0)
    A("  s_nop 7", "MFMA result -> VALU")
    for r, d in [(3, 111), (0, 96), (1, 97), (2, 98)]:
        A("  v_cndmask_b32 v%d, v%d, v%d, vcc" % (d, ACC + r, ACC + 4 + r))
    A("  s_cbranch_scc0 L_other")
    def pack():
        for r in range(3):
            A("  v_perm_b32 v%d, v%d, v111, s%d" % (96 + r, 96 + r, 4 + r))
    pack()
    A("  buffer_store_dwordx4 v[96:99], v91, s[48:51], s60 offen")
    A("  s_endpgm")
    A("L_other:")
    A("  s_cmp_eq_u32 s31, 0")
    A("  s_cbranch_scc1 L_consume")
    pack()
    A("  buffer_store_dwordx4 v[96:99], v91, s[48:51], s60 offen sc1")
    A("  s_endpgm")
    A("L_fin2:")
    A("  s_cmp_eq_u32 s31, 0")
    A("  s_cbranch_scc1 L_fin4")
    A("  s_mov_b64 exec, 0xff")
    A("  buffer_store_dwordx4 v[108:111], v0, s[48:51], s60 offen offset:1024 sc1")
    A("  s_mov_b64 exec, -1")
    A("  s_branch L_fin3")
    A("L_fin4:", "reader: first look at the records, tree token folded into its own partial")
    spoll()
    opoll()
    A("  v_max_f32 v8, v108, v122")
    A("  v_sub_f32 v123, v108, v8")
    A("  v_sub_f32 v122, v122, v8")
    A("  v_exp_f32 v123, v123")
    A("  v_exp_f32 v122, v122")
    A("  v_mov_b32 v108, v8")
    A("  v_fma_f32 v109, v109, v123, v122")
    for r in range(4):
        A("  v_mul_f32 v%d, v122, v%d" % (118 + r, 118 + r))
    A("  s_branch L_fin3")
    A("L_consume:")
    for r, d in enumerate([96, 97, 98, 111]):
        A("  v_fma_f32 v%d, v%d, v123, v%d" % (96 + r, d, 118 + r))
    A("  s_mov_b32 s4, 0x04000c0c")
    A("  s_mov_b32 s5, 0x0706000c")
    A("L_spoll:")
    A("  s_waitcnt vmcnt(0)")
    chk(26, 30, 34, "L_sok")
    spoll()
    A("  s_sub_u32 s57, s57, 1")
    A("  s_cbranch_scc0 L_spoll")
    A("  s_waitcnt vmcnt(0)")
    A("L_sok:")
    chk(15, 19, 23, "L_noo")
    opoll()
    A("L_noo:")
    C("weights g_k = 2^(m_k - M) / L")
    A("  v_max3_f32 v8, v108, v24, v28")
    A("  v_max_f32 v8, v8, v32")
    A("  v_sub_f32 v108, v108, v8")
    for k in range(3):
        A("  v_sub_f32 v%d, v%d, v8" % (24 + 4 * k, 24 + 4 * k))
    A("  v_exp_f32 v108, v108")
    for k in range(3):
        A("  v_exp_f32 v%d, v%d" % (24 + 4 * k, 24 + 4 * k))
    A("  v_mul_f32 v109, v108, v109")
    for k in range(3):
        A("  v_fmac_f32 v109, v%d, v%d" % (24 + 4 * k, 25 + 4 * k))
    A("  v_rcp_f32 v109, v109")
    A("  s_mov_b32 s57, 0x200000")
    A("  v_mul_f32 v108, v108, v109")
    for k in range(3):
        A("  v_mul_f32 v%d, v%d, v109" % (24 + 4 * k, 24 + 4 * k))
    A("  v_pk_mul_f32 v[96:97], v[96:97], v[108:109] op_sel_hi:[1,0]")
    A("  v_pk_mul_f32 v[98:99], v[98:99], v[108:109] op_sel_hi:[1,0]")
    A("L_opoll:")
    A("  s_waitcnt vmcnt(0)")
    chk(15, 19, 23, "L_ook")
    opoll()
    A("  s_sub_u32 s57, s57, 1")
    A("  s_cbranch_scc0 L_opoll")
    A("  s_waitcnt vmcnt(0)")
    A("L_ook:")
    for k in range(3):
        b = 12 + 4 * k
        A("  v_perm_b32 v%d, v%d, v%d, s4" % (b + 3, b + 2, b + 1))
    for k in range(3):
        b = 12 + 4 * k
        A("  v_pk_fma_f32 v[96:97], v[%d:%d], v[%d:%d], v[96:97] op_sel_hi:[1,0,1]" % (b, b + 1, 24 + 4 * k, 25 + 4 * k))
        A("  v_perm_b32 v%d, v%d, v%d, s5" % (b + 3, b + 3, b))
    for k in range(3):
        b = 12 + 4 * k
        A("  v_pk_fma_f32 v[98:99], v[%d:%d], v[%d:%d], v[98:99] op_sel_hi:[1,0,1]" % (b + 2, b + 3, 24 + 4 * k, 25 + 4 * k))
    A("  v_cvt_pk_bf16_f32 v96, v96, v97")
    A("  v_cvt_pk_bf16_f32 v97, v98, v99")
    A("  buffer_store_dwordx2 v[96:97], v93, s[40:43], 0 offen")
    A("L_exit:")
    A("  s_endpgm")
    A('.section .rodata,"a"')
    A(".p2align 6")
    A(".amdhsa_kernel %s_kernel" % NAME)
    A("  .amdhsa_next_free_vgpr 128")
    A("  .amdhsa_next_free_sgpr 64")
    A("  .amdhsa_accum_offset 128")
    A("  .amdhsa_group_segment_fixed_size 0")
    A("  .amdhsa_kernarg_size 72")
    A("  .amdhsa_user_sgpr_count 2")
    A("  .amdhsa_user_sgpr_kernarg_segment_ptr 1")
    A("  .amdhsa_system_sgpr_workgroup_id_x 1")
    A(".end_amdhsa_kernel")
    return "\n".join(L) + "\n"

if __name__ == "__main__":
    open(sys.argv[1], "w").write(gen(N=int(sys.argv[2]) if len(sys.argv) > 2 else 21))
```

```python
import sys, math, struct
from gen2 import header, footer, f2u, NAME

def gen(nt=1, stamps=0, N=20, it1=3, it2=6, trit=7, chkit=10, xit=19, lprio=3, light=0,
        da=-1, db=-1, dk=10, skew=0, bst=0, uo=2, vtouch=0, prog=0, kt=0, N2=28, vt0=0, N3=20, x0N=0, xmask=7):
    L = []; A = L.append
    NT = " nt" if nt else ""
    W = 5
    def ST(i):
        if stamps and light and i == 4:
            A("  s_mov_b32 s72, 1")
        if stamps and (not light or i == 11):
            A("  s_memrealtime s[%d:%d]" % (64 + 2 * i, 65 + 2 * i))
            A("  s_waitcnt lgkmcnt(0)")
    SL = 65536
    QL = SL + 24576
    MT = SL + 32768
    header(L, "; @launch grid=(256,1,1) block=(320,1,1) lds=%d" % (MT + 256))
    A("  s_load_dwordx16 s[4:19], s[0:1], 0")
    A("  s_load_dwordx2 s[20:21], s[0:1], 64")
    A("  s_cmp_ge_u32 s2, 256")
    A("  s_cbranch_scc1 L_exit")
    if stamps:
        for i in range(1, 12):
            A("  s_mov_b64 s[%d:%d], 0" % (64 + 2 * i, 65 + 2 * i))
        A("  s_memrealtime s[64:65]")
    A("  v_lshrrev_b32 v1, 6, v0")
    A("  v_and_b32 v0, 63, v0")
    A("  v_readfirstlane_b32 s3, v1")
    A("  s_and_b32 s22, s2, 7")
    A("  s_lshr_b32 s23, s2, 5")
    A("  s_lshl3_add_u32 s22, s22, s23")
    A("  s_bfe_u32 s23, s2, 0x20003")
    A("  v_lshrrev_b32 v8, 4, v0")
    A("  v_and_b32 v9, 15, v0")
    A("  s_cmp_lg_u32 s3, 0")
    A("  s_cbranch_scc1 L_cons")
    if lprio:
        A("  s_setprio %d" % lprio)
    A("  v_xor_b32 v1, v9, v8")
    A("  v_lshlrev_b32 v1, 4, v1")
    A("  v_lshl_add_u32 v1, v8, 8, v1")
    A("  v_xor_b32 v2, 64, v1")
    A("  v_xor_b32 v3, 0x80, v1")
    A("  v_xor_b32 v4, 0xc0, v1")
    A("  s_lshl_b32 s56, s22, 20")
    A("  s_lshl_b32 s46, s23, 18")
    A("  s_mov_b32 s45, s46")
    A("  s_mov_b32 s26, 0x100000")
    A("  s_mov_b32 s27, 0x20000")
    A("  s_mov_b32 m0, 0")
    A("  v_lshlrev_b32 v5, 1, v8")
    A("  v_xor_b32 v5, v9, v5")
    A("  v_lshlrev_b32 v5, 4, v5")
    A("  v_lshl_add_u32 v5, v8, 8, v5")
    A("  v_xor_b32 v6, 0x80, v5")
    A("  s_mov_b32 s44, 0")
    A("  s_waitcnt lgkmcnt(0)")
    ST(1)
    A("  s_add_u32 s24, s6, s56")
    A("  s_addc_u32 s25, s7, 0")
    p = (N - 1) % 16
    assert 17 <= N <= 32
    def group(kind, Nw=None, first=True):
        Nw = Nw or N
        p = (Nw - 1) - 16
        assert 0 <= p < 16
        for u in range(4):
            for i in range(4):
                A("  s_waitcnt vmcnt(%d)" % (Nw - 1))
                if 4 * u + i == p:
                    if kind == "k" and first:
                        A("  s_cmp_lt_u32 s44, 2")
                        A("  s_cbranch_scc1 L_nobar")
                    if bst:
                        A("  s_memtime s[88:89]")
                        A("  s_waitcnt lgkmcnt(0)")
                    A("  s_barrier")
                    if bst:
                        A("  s_memtime s[90:91]")
                        A("  s_waitcnt lgkmcnt(0)")
                        A("  s_sub_u32 s88, s90, s88")
                        A("  s_cmp_lt_u32 s44, 6")
                        A("  s_cselect_b32 s89, s88, 0")
                        A("  s_add_u32 s74, s74, s89")
                        A("  s_add_u32 s76, s76, s88")
                        A("  s_max_u32 s78, s78, s88")
                    if kind == "k" and first:
                        A("L_nobar:")
                A("  buffer_load_dwordx4 v%d, s[24:27], s46 offen offset:%d%s lds" % ((1 + i) if kind == "k" else (5 + (i & 1)), 1024 * i, NT))
            if not uo:
                A("  s_add_u32 s46, s46, 0x1000")
            elif u < 3:
                if uo == 1:
                    A("  s_add_u32 s46, s46, 0x%x" % [0x1000, 0x7000, 0x1000][u])
                else:
                    A("  s_xor_b32 s46, s46, 0x%x" % [0x2000, 0x3000, 0x2000][u])
            A("  s_add_u32 m0, m0, 0x1000")
        A("  s_and_b32 m0, m0, 0xffff")
        A("  s_add_u32 s44, s44, 1")
        if prog:
            for gi, slot in ((8, 4), (14, 5), (16, 6), (18, 7), (20, 8), (24, 9)):
                if (gi <= 16) == (kind == "k") and (first or gi == 16 or gi == 18) and not (first and ((kt and gi == 16) or (vt0 and gi == 18))):
                    A("  s_cmp_eq_u32 s44, %d" % gi)
                    A("  s_cbranch_scc0 L_pg%d" % gi)
                    A("  s_memrealtime s[%d:%d]" % (64 + 2 * slot, 65 + 2 * slot))
                    A("L_pg%d:" % gi)
        if uo == 2:
            A("  s_brev_b32 s47, s44")
            A("  s_lshr_b32 s47, s47, 15")
            A("  s_and_b32 s47, s47, 0x1c000")
            A("  s_and_b32 s48, s44, 8")
            A("  s_lshl_b32 s48, s48, 14")
            A("  s_or_b32 s46, s45, s47")
            A("  s_or_b32 s46, s46, s48")
        if uo == 1:
            A("  s_and_b32 s47, s44, 5")
            A("  s_and_b32 s48, s44, 10")
            A("  s_mul_i32 s47, s47, 0x3000")
            A("  s_mul_i32 s48, s48, 0xc000")
            A("  s_and_b32 s47, s47, 0x6000")
            A("  s_and_b32 s48, s48, 0x30000")
            A("  s_or_b32 s46, s45, s47")
            A("  s_or_b32 s46, s46, s48")
    if x0N:
        A("  s_and_b32 s47, s2, %d" % xmask)
        A("  s_cbranch_scc1 L_lk")
        n0 = len(L)
        A("L_lk:")
        group("k", x0N)
        A("  s_cmp_lt_u32 s44, 16")
        A("  s_cbranch_scc1 L_lk")
        A("  s_add_u32 s24, s8, s56")
        A("  s_addc_u32 s25, s9, 0")
        A("L_lv:")
        group("v", x0N)
        A("  s_cmp_lt_u32 s44, 32")
        A("  s_cbranch_scc1 L_lv")
        L[n0:] = [x.replace("L_lk", "L_xk").replace("L_lv", "L_xv").replace("L_nobar", "L_xnobar") for x in L[n0:]]
        A("  s_branch L_ldrain")
    A("L_lk:")
    group("k")
    A("  s_cmp_lt_u32 s44, %d" % (16 - kt))
    A("  s_cbranch_scc1 L_lk")
    if kt:
        A("L_lk2:")
        group("k", N2, False)
        A("  s_cmp_lt_u32 s44, 16")
        A("  s_cbranch_scc1 L_lk2")
    A("  s_add_u32 s24, s8, s56")
    A("  s_addc_u32 s25, s9, 0")
    if not uo: A("  s_lshl_b32 s46, s23, 18")
    if vt0:
        A("L_lv0:")
        group("v", N3, False)
        A("  s_cmp_lt_u32 s44, %d" % (16 + vt0))
        A("  s_cbranch_scc1 L_lv0")
    A("L_lv:")
    group("v")
    A("  s_cmp_lt_u32 s44, 32")
    A("  s_cbranch_scc1 L_lv")
    A("L_ldrain:")
    ST(2)
    A("  s_waitcnt vmcnt(16)")
    A("  s_barrier")
    A("  s_waitcnt vmcnt(8)")
    A("  s_barrier")
    A("  s_waitcnt vmcnt(0)")
    if prog:
        A("  s_memrealtime s[70:71]")
        A("  s_waitcnt lgkmcnt(0)")
    ST(3)
    A("  s_barrier")
    A("  s_branch L_end" if stamps else "  s_endpgm")
    A("L_cons:")
    Q, S, PA, KF, SA, SB, VB, VA, ACC, PB = 12, 28, 36, 40, 40, 48, 64, 72, 80, 112
    A("  s_sub_u32 s3, s3, 1")
    A("  v_lshlrev_b32 v91, 4, v0")
    A("  s_lshl_b32 s59, s3, 11")
    A("  s_add_u32 s59, s59, %d" % QL)
    A("  s_lshl_b32 s57, s22, 11")
    A("  s_movk_i32 s34, 2048")
    A("  s_mov_b32 s35, 0x20000")
    A("  s_mov_b32 m0, s59")
    A("  v_xor_b32 v1, v8, v9")
    A("  v_lshlrev_b32 v1, 4, v1")
    A("  v_lshl_add_u32 v1, v9, 8, v1")
    A("  s_lshl_b32 s56, s3, 12")
    A("  v_add_u32 v1, s56, v1")
    A("  v_xor_b32 v2, 64, v1")
    A("  v_xor_b32 v3, 0x80, v1")
    A("  v_xor_b32 v4, 0xc0, v1")
    A("  v_bfe_u32 v5, v0, 2, 4")
    A("  v_and_b32 v6, 7, v5")
    A("  v_lshlrev_b32 v6, 1, v6")
    A("  v_bfe_u32 v7, v0, 1, 1")
    A("  s_lshl_b32 s56, s3, 2")
    A("  v_add_u32 v7, s56, v7")
    A("  v_xor_b32 v6, v6, v7")
    A("  v_lshlrev_b32 v6, 4, v6")
    A("  v_lshl_add_u32 v5, v5, 8, v6")
    A("  v_and_b32 v6, 1, v0")
    A("  v_lshl_add_u32 v5, v6, 3, v5")
    A("  v_xor_b32 v6, 32, v5")
    A("  v_and_b32 v7, 7, v0")
    A("  v_lshlrev_b32 v7, 8, v7")
    A("  v_lshlrev_b32 v10, 4, v8")
    A("  v_lshlrev_b32 v11, 3, v8")
    A("  s_lshl_b32 s56, s3, 6")
    A("  v_add_u32 v11, s56, v11")
    A("  v_bfe_u32 v93, v0, 3, 1")
    A("  v_lshl_add_u32 v11, v93, 5, v11")
    A("  v_add_u32 v93, v11, v7")
    A("  v_add3_u32 v7, v7, v10, s59")
    A("  v_and_b32 v0, 0x70, v91")
    A("  v_lshl_add_u32 v106, v8, 7, v0")
    A("  v_add_u32 v106, %d, v106" % SL)
    A("  s_lshl_b32 s56, s3, 9")
    A("  v_add_u32 v107, s56, v106")
    A("  v_lshlrev_b32 v95, 4, v9")
    A("  v_add_u32 v95, %d, v95" % MT)
    c = (128 ** -0.5) * math.log2(math.e)
    A("  s_mov_b32 s53, 0x%08x" % f2u(c))
    A("  s_mov_b32 s54, s53")
    A("  s_mov_b32 s55, s53")
    A("  v_mov_b32 v88, 0xff800000")
    A("  v_mov_b32 v89, 0")
    for i in range(4):
        A("  v_mov_b64 v[%d:%d], 0" % (ACC + 2 * i, ACC + 2 * i + 1))
    A("  v_mov_b32 v90, 0")
    A("  v_mov_b32 v92, 0")
    A("  s_waitcnt lgkmcnt(0)")
    A("  s_add_u32 s32, s4, s57")
    A("  s_addc_u32 s33, s5, 0")
    A("  buffer_load_dwordx4 v91, s[32:35], 0 offen lds")
    A("  buffer_load_dwordx4 v91, s[32:35], 0 offen offset:1024 lds")
    A("  s_lshl_b32 s56, s22, 15")
    A("  s_add_u32 s48, s20, s56")
    A("  s_addc_u32 s49, s21, 0")
    A("  s_mov_b32 s50, 0x8000")
    A("  s_mov_b32 s51, 0x20000")
    A("  s_mov_b32 s36, s18")
    A("  s_mov_b32 s37, s19")
    A("  s_movk_i32 s38, 256")
    A("  s_mov_b32 s39, 0x20000")
    A("  s_lshl_b32 s56, s22, 11")
    A("  s_add_u32 s40, s16, s56")
    A("  s_addc_u32 s41, s17, 0")
    A("  s_movk_i32 s42, 2048")
    A("  s_mov_b32 s43, 0x20000")
    A("  s_lshl_b32 s57, s3, 13")
    A("  s_lshl_b32 s56, s23, 11")
    A("  s_add_u32 s60, s56, s57")
    A("  s_lshl_b32 s57, s23, 13")
    for k in range(1, 4):
        A("  s_add_u32 s56, s23, %d" % k)
        A("  s_and_b32 s56, s56, 3")
        A("  s_lshl_b32 s56, s56, 11")
        A("  s_add_u32 s%d, s56, s57" % (60 + k))
    A("  s_add_u32 s24, s20, 0x200000")
    A("  s_addc_u32 s25, s21, 0")
    A("  s_mov_b32 s26, 0x20000")
    A("  s_mov_b32 s27, 0x20000")
    A("  s_lshl_b32 s28, s22, 8")
    A("  s_lshl3_add_u32 s28, s3, s28")
    A("  s_add_u32 s28, s28, 0x10000")
    A("  s_getreg_b32 s30, hwreg(HW_REG_XCC_ID, 0, 4)")
    A("  s_cmp_eq_u32 s3, s23")
    A("  s_cselect_b32 s31, 0, 2")
    A("  s_cselect_b32 s29, %d, -1" % trit)
    A("  s_cselect_b32 s46, %d, -1" % (trit + 3))
    A("  s_xor_b32 s56, s3, 3")
    A("  s_or_b32 s56, s56, s2")
    A("  s_cselect_b32 s44, -1, %d" % it1)
    A("  s_cselect_b32 s45, -1, %d" % it2)
    A("  s_cbranch_scc1 L_notag0")
    A("  buffer_load_dword v94, v92, s[24:27], 0 offen sc1")
    A("L_notag0:")
    ev = [it1, it2, trit, trit + 3, chkit, chkit + 4, 16, xit, xit + 3, 31]
    assert trit + 3 < 16 and it2 < chkit and chkit + 4 < xit
    A("  s_mov_b32 s58, 0x%x" % sum(1 << e for e in set(ev)))
    A("  s_mov_b32 s47, 0")
    A("  s_mov_b32 s52, 0")
    if vtouch:
        A("  s_mov_b32 s32, s8")
        A("  s_mov_b32 s33, s9")
    A("  s_mov_b32 s8, 0x00ff00ff")
    A("  s_mov_b32 s9, 0x00ff00ff")
    A("  s_barrier")
    ST(4)
    for j in range(4):
        A("  ds_read_b128 v[%d:%d], v%d" % (KF + 4 * j, KF + 3 + 4 * j, 1 + j))
    A("  s_waitcnt vmcnt(0)")
    for j in range(4):
        A("  ds_read_b128 v[%d:%d], v7 offset:%d" % (Q + 4 * j, Q + 3 + 4 * j, 64 * j))
    A("  s_waitcnt lgkmcnt(0)")
    A("  s_branch L_kq")
    A("L_kloop:")
    A("  s_barrier")
    for j in range(4):
        A("  ds_read_b128 v[%d:%d], v%d" % (KF + 4 * j, KF + 3 + 4 * j, 100 + j))
    A("L_kq:")
    for j in range(4):
        cc = "0" if j == 0 else "v[%d:%d]" % (S, S + 3)
        A("  s_waitcnt lgkmcnt(%d)" % (3 - j))
        A("  v_mfma_f32_16x16x32_bf16 v[%d:%d], v[%d:%d], v[%d:%d], %s" % (S, S + 3, KF + 4 * j, KF + 3 + 4 * j, Q + 4 * j, Q + 3 + 4 * j, cc))
    A("  s_add_u32 s52, s52, 0x4000")
    A("  s_and_b32 s52, s52, 0xffff")
    A("  s_add_u32 s47, s47, 1")
    for k in range(4):
        A("  v_add_u32 v%d, s52, v%d" % (100 + k, 1 + k))
    A("  s_mov_b64 exec, s[8:9]")
    A("  ds_write_b128 v107, v[%d:%d]" % (S, S + 3))
    A("  s_mov_b64 exec, -1")
    A("  v_max3_f32 v88, v88, v%d, v%d" % (S, S + 1))
    A("  v_max3_f32 v88, v88, v%d, v%d" % (S + 2, S + 3))
    A("  v_add_u32 v107, 0x800, v107")
    A("  s_bitcmp1_b32 s58, s47")
    A("  s_cbranch_scc0 L_kloop")
    A("  s_cmp_eq_u32 s47, 16")
    A("  s_cbranch_scc0 L_events")
    A("  v_mul_f32 v88, s53, v88")
    A("  s_lshl_b32 s56, s3, 2")
    A("  v_mov_b32 v9, v88")
    A("  v_add_u32 v8, s56, v95")
    A("  v_mov_b32 v104, v5")
    A("  v_permlane32_swap_b32 v88, v9")
    A("  v_max_f32 v88, v88, v9")
    A("  v_mov_b32 v9, v88")
    A("  v_mov_b32 v105, v6")
    A("  s_nop 0")
    A("  v_permlane16_swap_b32 v88, v9")
    A("  v_max_f32 v88, v88, v9")
    A("  ds_write_b32 v8, v88")
    A("  s_waitcnt lgkmcnt(0)")
    A("  s_barrier")
    A("  ds_read_b128 v[%d:%d], v95" % (S, S + 3))
    def sreads():
        for k in range(4):
            A("  ds_read_b128 v[%d:%d], v106 offset:%d" % (SA + 4 * k, SA + 3 + 4 * k, 512 * k))
        A("  v_add_u32 v106, 0x800, v106")
    def pcomp(Sx, Pd):
        for i in range(0, 8, 2):
            A("  v_pk_fma_f32 v[%d:%d], v[%d:%d], s[54:55], v[88:89] op_sel_hi:[1,1,0] neg_lo:[0,0,1] neg_hi:[0,0,1]" % (Sx + i, Sx + i + 1, Sx + i, Sx + i + 1))
        for i in range(8):
            A("  v_exp_f32 v%d, v%d" % (Sx + i, Sx + i))
        for m in range(4):
            A("  v_cvt_pk_bf16_f32 v%d, v%d, v%d" % (Pd + m, Sx + 2 * m, Sx + 1 + 2 * m))
    def lsum():
        A("  v_pk_add_f32 v[%d:%d], v[%d:%d], v[%d:%d]" % (SA, SA + 1, SA, SA + 1, SA + 2, SA + 3))
        A("  v_pk_add_f32 v[%d:%d], v[%d:%d], v[%d:%d]" % (SA + 4, SA + 5, SA + 4, SA + 5, SA + 6, SA + 7))
        A("  v_pk_add_f32 v[%d:%d], v[%d:%d], v[%d:%d]" % (SB, SB + 1, SB, SB + 1, SB + 2, SB + 3))
        A("  v_pk_add_f32 v[%d:%d], v[%d:%d], v[%d:%d]" % (SB + 4, SB + 5, SB + 4, SB + 5, SB + 6, SB + 7))
        A("  v_pk_add_f32 v[%d:%d], v[%d:%d], v[%d:%d]" % (SA, SA + 1, SA, SA + 1, SA + 4, SA + 5))
        A("  v_pk_add_f32 v[%d:%d], v[%d:%d], v[%d:%d]" % (SB, SB + 1, SB, SB + 1, SB + 4, SB + 5))
        A("  v_pk_add_f32 v[%d:%d], v[%d:%d], v[%d:%d]" % (SA, SA + 1, SA, SA + 1, SB, SB + 1))
        A("  v_add_f32 v89, v89, v%d" % SA)
        A("  v_add_f32 v89, v89, v%d" % (SA + 1))
    sreads()
    A("  s_waitcnt lgkmcnt(4)")
    A("  v_max3_f32 v88, v%d, v%d, v%d" % (S, S + 1, S + 2))
    A("  v_max_f32 v88, v88, v%d" % (S + 3))
    A("  s_waitcnt lgkmcnt(2)")
    pcomp(SA, PA)
    A("  s_waitcnt lgkmcnt(0)")
    pcomp(SB, PB)
    lsum()
    A("  s_branch L_vbody")
    def trreads(V, off):
        A("  ds_read_b64_tr_b16 v[%d:%d], v104 offset:%d" % (V, V + 1, off))
        A("  ds_read_b64_tr_b16 v[%d:%d], v104 offset:%d" % (V + 2, V + 3, off + 4096))
        A("  ds_read_b64_tr_b16 v[%d:%d], v105 offset:%d" % (V + 4, V + 5, off))
        A("  ds_read_b64_tr_b16 v[%d:%d], v105 offset:%d" % (V + 6, V + 7, off + 4096))
    def pv(V, Pr, n):
        A("  s_waitcnt lgkmcnt(%d)" % (n + 2))
        A("  v_mfma_f32_16x16x32_bf16 v[%d:%d], v[%d:%d], v[%d:%d], v[%d:%d]" % (ACC, ACC + 3, V, V + 3, Pr, Pr + 3, ACC, ACC + 3))
        A("  s_waitcnt lgkmcnt(%d)" % n)
        A("  v_mfma_f32_16x16x32_bf16 v[%d:%d], v[%d:%d], v[%d:%d], v[%d:%d]" % (ACC + 4, ACC + 7, V + 4, V + 7, Pr, Pr + 3, ACC + 4, ACC + 7))
    A("L_vloop:")
    A("  s_barrier")
    A("L_vbody:")
    trreads(VA, 0)
    trreads(VB, 0x2000)
    sreads()
    A("  s_add_u32 s52, s52, 0x4000")
    A("  s_and_b32 s52, s52, 0xffff")
    A("  s_add_u32 s47, s47, 1")
    A("  v_add_u32 v104, s52, v5")
    A("  v_add_u32 v105, s52, v6")
    pv(VA, PA, 8)
    pv(VB, PB, 4)
    A("  s_waitcnt lgkmcnt(2)")
    pcomp(SA, PA)
    A("  s_waitcnt lgkmcnt(0)")
    pcomp(SB, PB)
    lsum()
    A("  s_bitcmp1_b32 s58, s47")
    A("  s_cbranch_scc0 L_vloop")
    A("  s_cmp_eq_u32 s47, 31")
    A("  s_cbranch_scc1 L_final")
    A("L_events:")
    A("  s_cmp_eq_u32 s47, s44")
    A("  s_cbranch_scc0 L_not1")
    A("  s_waitcnt vmcnt(0)")
    A("  v_add_u32 v94, 1, v94")
    A("  v_max_u32 v94, 1, v94")
    A("  s_mov_b64 exec, 1")
    A("  buffer_store_dword v94, v92, s[24:27], 0 offen sc1")
    A("  s_mov_b64 exec, -1")
    A("L_not1:")
    A("  s_cmp_eq_u32 s47, s45")
    A("  s_cbranch_scc0 L_not2")
    A("  s_waitcnt vmcnt(0)")
    A("  s_mov_b64 exec, 1")
    if skew:
        A("  v_mov_b32 v9, s64")
        A("  buffer_store_dword v9, v92, s[36:39], 0 offen offset:4 sc1")
    A("  buffer_store_dword v94, v92, s[36:39], 0 offen sc1")
    A("  s_mov_b64 exec, -1")
    A("L_not2:")
    A("  s_cmp_eq_u32 s47, s29")
    A("  s_cbranch_scc0 L_notr1")
    A("  s_lshl_b32 s57, s22, 8")
    A("  s_add_u32 s4, s10, s57")
    A("  s_addc_u32 s5, s11, 0")
    A("  s_movk_i32 s6, 256")
    A("  s_mov_b32 s7, 0x20000")
    TK = [56, 60, 64, 68]
    for j in range(4):
        A("  buffer_load_dwordx4 v[%d:%d], v10, s[4:7], 0 offen offset:%d" % (TK[j], TK[j] + 3, 64 * j))
    A("  s_add_u32 s4, s12, s57")
    A("  s_addc_u32 s5, s13, 0")
    A("  s_lshr_b32 s57, s22, 2")
    A("  buffer_load_dwordx2 v[120:121], v11, s[4:7], 0 offen")
    A("  s_mov_b32 s4, s14")
    A("  s_mov_b32 s5, s15")
    A("  s_movk_i32 s6, 32")
    A("  s_lshl_b32 s57, s57, 1")
    A("  buffer_load_ushort v122, v92, s[4:7], s57 offen")
    if vtouch:
        A("  s_lshl_b32 s57, s22, 20")
        A("  s_add_u32 s4, s62v, s57".replace("s62v", "s32"))
        A("  s_addc_u32 s5, s33, 0")
        A("  s_mov_b32 s6, 0x100000")
        A("  s_lshl_b32 s57, s23, 18")
        A("  buffer_load_dword v123, v92, s[4:7], s57 offen nt")
    A("L_notr1:")
    A("  s_cmp_eq_u32 s47, s46")
    A("  s_cbranch_scc0 L_notr2")
    A("  s_waitcnt vmcnt(0)")
    for j in range(4):
        cc = "0" if j == 0 else "v[124:127]"
        A("  v_mfma_f32_16x16x32_bf16 v[124:127], v[%d:%d], v[%d:%d], %s" % (TK[j], TK[j] + 3, Q + 4 * j, Q + 3 + 4 * j, cc))
    A("  v_lshlrev_b32 v122, 16, v122")
    A("  v_sub_f32 v122, 1.0, v122")
    A("  v_mul_f32 v122, 0x%08x, v122" % f2u(-1e9 * math.log2(math.e)))
    A("  v_and_b32 v119, 0xffff0000, v120")
    A("  v_lshlrev_b32 v118, 16, v120")
    A("  v_lshlrev_b32 v120, 16, v121")
    A("  v_and_b32 v121, 0xffff0000, v121")
    A("  s_nop 1")
    A("  v_fma_f32 v122, v124, s53, v122")
    A("L_notr2:")
    A("  s_cmp_eq_u32 s47, %d" % chkit)
    A("  s_cbranch_scc0 L_nochk")
    A("  buffer_load_dword v90, v92, s[36:39], 0 offen sc1")
    A("L_nochk:")
    A("  s_cmp_eq_u32 s47, %d" % (chkit + 4))
    A("  s_cbranch_scc0 L_tagdone")
    A("  s_mov_b32 s57, 0x200000")
    A("L_tagspin:")
    A("  s_waitcnt vmcnt(0)")
    A("  v_readfirstlane_b32 s59, v90")
    A("  s_cmp_lg_u32 s59, 0")
    A("  s_cbranch_scc1 L_tagok")
    A("  buffer_load_dword v90, v92, s[36:39], 0 offen sc1")
    A("  s_sub_u32 s57, s57, 1")
    A("  s_cbranch_scc0 L_tagspin")
    A("L_tagok:")
    A("  s_cmp_lg_u32 s31, 0")
    A("  s_cbranch_scc1 L_tagdone")
    A("  v_mov_b32 v8, v90")
    A("  v_mov_b32 v9, s30")
    A("  s_mov_b64 exec, 1")
    A("  buffer_store_dwordx2 v[8:9], v92, s[24:27], s28 offen sc1")
    A("  s_mov_b64 exec, -1")
    A("L_tagdone:")
    A("  s_cmp_eq_u32 s47, %d" % xit)
    A("  s_cbranch_scc0 L_nox1")
    A("  buffer_load_dwordx2 v[100:101], v92, s[24:27], s28 offen sc1")
    A("L_nox1:")
    A("  s_cmp_eq_u32 s47, %d" % (xit + 3))
    A("  s_cbranch_scc0 L_nox2")
    A("  s_waitcnt vmcnt(0)")
    A("  v_readfirstlane_b32 s57, v100")
    A("  v_readfirstlane_b32 s56, v101")
    A("  s_xor_b32 s57, s57, s59")
    A("  s_xor_b32 s56, s56, s30")
    A("  s_or_b32 s57, s57, s56")
    A("  s_cbranch_scc1 L_nox2")
    A("  s_lshr_b32 s31, s31, 1")
    A("L_nox2:")
    A("  s_cmp_lt_u32 s47, 16")
    A("  s_cbranch_scc1 L_kloop")
    A("  s_branch L_vloop")
    A("L_final:")
    A("  v_mov_b32 v9, v89")
    A("  v_mov_b32 v108, v88")
    A("  v_mov_b32 v99, v90")
    A("  v_permlane32_swap_b32 v89, v9")
    A("  v_add_f32 v89, v89, v9")
    A("  v_mov_b32 v9, v89")
    A("  v_mov_b32 v110, v90")
    A("  s_mov_b32 s57, 0x200000")
    A("  v_permlane16_swap_b32 v89, v9")
    A("  v_add_f32 v109, v89, v9")
    def spoll():
        for k in range(3):
            A("  buffer_load_dwordx4 v[%d:%d], v0, s[48:51], s%d offen offset:1024 sc1" % (24 + 4 * k, 27 + 4 * k, 61 + k))
    def opoll():
        for k in range(3):
            A("  buffer_load_dwordx4 v[%d:%d], v91, s[48:51], s%d offen sc1" % (12 + 4 * k, 15 + 4 * k, 61 + k))
    def chk(a, b, c_, ok):
        A("  v_xor_b32 v8, v%d, v90" % a)
        A("  v_xor_b32 v9, v%d, v90" % b)
        A("  v_xor_b32 v10, v%d, v90" % c_)
        A("  v_or3_b32 v8, v8, v9, v10")
        A("  v_cmp_ne_u32 vcc, 0, v8")
        A("  s_cbranch_vccz %s" % ok)
    A("  s_cmp_eq_u32 s31, 1")
    A("  s_cbranch_scc0 L_fin2")
    A("  s_mov_b64 exec, 0xff")
    A("  buffer_store_dwordx4 v[108:111], v0, s[48:51], s60 offen offset:1024")
    A("  s_mov_b64 exec, -1")
    A("L_fin3:")
    A("  s_barrier")
    trreads(VA, 0)
    A("  s_mov_b32 s4, 0x07060501")
    A("  s_mov_b32 s5, 0x07060502")
    A("  s_mov_b32 s6, 0x07060503")
    A("  s_mov_b32 vcc_lo, 0xff00ff00")
    A("  s_mov_b32 vcc_hi, 0xff00ff00")
    A("  s_cmp_eq_u32 s31, 1")
    pv(VA, PA, 0)
    ST(6)
    A("  s_barrier")
    trreads(VB, 0x2000)
    pv(VB, PB, 0)
    A("  s_nop 7")
    for r, d in [(3, 111), (0, 96), (1, 97), (2, 98)]:
        A("  v_cndmask_b32 v%d, v%d, v%d, vcc" % (d, ACC + r, ACC + 4 + r))
    A("  s_cbranch_scc0 L_other")
    def pack():
        for r in range(3):
            A("  v_perm_b32 v%d, v%d, v111, s%d" % (96 + r, 96 + r, 4 + r))
    pack()
    A("  buffer_store_dwordx4 v[96:99], v91, s[48:51], s60 offen")
    ST(9)
    A("  s_branch L_end" if stamps else "  s_endpgm")
    A("L_other:")
    A("  s_cmp_eq_u32 s31, 0")
    A("  s_cbranch_scc1 L_consume")
    pack()
    A("  buffer_store_dwordx4 v[96:99], v91, s[48:51], s60 offen sc1")
    ST(9)
    A("  s_branch L_end" if stamps else "  s_endpgm")
    A("L_fin2:")
    A("  s_cmp_eq_u32 s31, 0")
    A("  s_cbranch_scc1 L_fin4")
    A("  s_mov_b64 exec, 0xff")
    A("  buffer_store_dwordx4 v[108:111], v0, s[48:51], s60 offen offset:1024 sc1")
    A("  s_mov_b64 exec, -1")
    A("  s_branch L_fin3")
    A("L_fin4:")
    spoll()
    opoll()
    A("  v_max_f32 v8, v108, v122")
    A("  v_sub_f32 v123, v108, v8")
    A("  v_sub_f32 v122, v122, v8")
    A("  v_exp_f32 v123, v123")
    A("  v_exp_f32 v122, v122")
    A("  v_mov_b32 v108, v8")
    A("  v_fma_f32 v109, v109, v123, v122")
    for r in range(4):
        A("  v_mul_f32 v%d, v122, v%d" % (118 + r, 118 + r))
    A("  s_branch L_fin3")
    A("L_consume:")
    for r, d in enumerate([96, 97, 98, 111]):
        A("  v_fma_f32 v%d, v%d, v123, v%d" % (96 + r, d, 118 + r))
    ST(9)
    A("  s_mov_b32 s4, 0x04000c0c")
    A("  s_mov_b32 s5, 0x0706000c")
    A("L_spoll:")
    A("  s_waitcnt vmcnt(0)")
    chk(26, 30, 34, "L_sok")
    spoll()
    A("  s_sub_u32 s57, s57, 1")
    A("  s_cbranch_scc0 L_spoll")
    A("  s_waitcnt vmcnt(0)")
    A("L_sok:")
    chk(15, 19, 23, "L_noo")
    opoll()
    A("L_noo:")
    A("  v_max3_f32 v8, v108, v24, v28")
    A("  v_max_f32 v8, v8, v32")
    A("  v_sub_f32 v108, v108, v8")
    for k in range(3):
        A("  v_sub_f32 v%d, v%d, v8" % (24 + 4 * k, 24 + 4 * k))
    A("  v_exp_f32 v108, v108")
    for k in range(3):
        A("  v_exp_f32 v%d, v%d" % (24 + 4 * k, 24 + 4 * k))
    A("  v_mul_f32 v109, v108, v109")
    for k in range(3):
        A("  v_fmac_f32 v109, v%d, v%d" % (24 + 4 * k, 25 + 4 * k))
    A("  v_rcp_f32 v109, v109")
    A("  s_mov_b32 s57, 0x200000")
    A("  v_mul_f32 v108, v108, v109")
    for k in range(3):
        A("  v_mul_f32 v%d, v%d, v109" % (24 + 4 * k, 24 + 4 * k))
    A("  v_pk_mul_f32 v[96:97], v[96:97], v[108:109] op_sel_hi:[1,0]")
    A("  v_pk_mul_f32 v[98:99], v[98:99], v[108:109] op_sel_hi:[1,0]")
    A("L_opoll:")
    A("  s_waitcnt vmcnt(0)")
    chk(15, 19, 23, "L_ook")
    opoll()
    A("  s_sub_u32 s57, s57, 1")
    A("  s_cbranch_scc0 L_opoll")
    A("  s_waitcnt vmcnt(0)")
    A("L_ook:")
    ST(10)
    for k in range(3):
        b = 12 + 4 * k
        A("  v_perm_b32 v%d, v%d, v%d, s4" % (b + 3, b + 2, b + 1))
    for k in range(3):
        b = 12 + 4 * k
        A("  v_pk_fma_f32 v[96:97], v[%d:%d], v[%d:%d], v[96:97] op_sel_hi:[1,0,1]" % (b, b + 1, 24 + 4 * k, 25 + 4 * k))
        A("  v_perm_b32 v%d, v%d, v%d, s5" % (b + 3, b + 3, b))
    for k in range(3):
        b = 12 + 4 * k
        A("  v_pk_fma_f32 v[98:99], v[%d:%d], v[%d:%d], v[98:99] op_sel_hi:[1,0,1]" % (b + 2, b + 3, 24 + 4 * k, 25 + 4 * k))
    A("  v_cvt_pk_bf16_f32 v96, v96, v97")
    A("  v_cvt_pk_bf16_f32 v97, v98, v99")
    A("  buffer_store_dwordx2 v[96:97], v93, s[40:43], 0 offen")
    if stamps:
        A("L_end:")
        A("  s_waitcnt vmcnt(0)")
        ST(11)
        if da >= 0:
            if skew:
                A("  s_cmp_eq_u32 s72, 0")
                A("  s_cbranch_scc1 L_exit")
                A("  buffer_load_dword v9, v92, s[36:39], 0 offen offset:4 sc1")
                A("  s_waitcnt vmcnt(0)")
                A("  v_readfirstlane_b32 s57, v9")
                if skew == 1:
                    A("  s_sub_u32 s56, s%d, s57" % (64 + 2 * db))
                else:
                    A("  s_sub_u32 s56, s57, s%d" % (64 + 2 * db))
                A("  s_max_i32 s56, s56, 0")
                A("  s_add_u32 s%d, s%d, s56" % (64 + 2 * 8, 64 + 2 * da))
                db = 8
            A("  s_cmp_eq_u32 s%d, 0" % (64 + 2 * da))
            A("  s_cbranch_scc1 L_exit")
            A("  s_cmp_eq_u32 s%d, 0" % (64 + 2 * db))
            A("  s_cbranch_scc1 L_exit")
            A("  s_sub_u32 s56, s%d, s%d" % (64 + 2 * db, 64 + 2 * da))
            A("  s_min_u32 s56, s56, 5000")
            A("  s_mul_i32 s56, s56, %d" % dk)
            A("L_dspin:")
            A("  s_memrealtime s[58:59]")
            A("  s_waitcnt lgkmcnt(0)")
            A("  s_sub_u32 s57, s58, s86")
            A("  s_cmp_lt_u32 s57, s56")
            A("  s_cbranch_scc1 L_dspin")
        else:
            A("  s_add_u32 s24, s20, 0x8000000")
            A("  s_addc_u32 s25, s21, 0")
            A("  s_mov_b32 s26, 0x100000")
            A("  s_mov_b32 s27, 0x20000")
            A("  s_getreg_b32 s58, hwreg(HW_REG_HW_ID)")
            A("  s_mul_i32 s56, s2, %d" % W)
            A("  v_readfirstlane_b32 s57, v128")
            A("  s_add_u32 s56, s56, s57")
            A("  s_lshl_b32 s56, s56, 7")
            A("  s_mov_b64 exec, 1")
            A("  v_mov_b32 v1, 0")
            for i in range(12):
                A("  v_mov_b32 v2, s%d" % (64 + 2 * i))
                A("  v_mov_b32 v3, s%d" % (65 + 2 * i))
                A("  buffer_store_dwordx2 v[2:3], v1, s[24:27], s56 offen offset:%d" % (8 * i))
                A("  s_nop 1")
            A("  s_getreg_b32 s57, hwreg(HW_REG_XCC_ID)")
            A("  v_mov_b32 v2, s57")
            A("  v_mov_b32 v3, s58")
            A("  buffer_store_dwordx2 v[2:3], v1, s[24:27], s56 offen offset:120")
    A("L_exit:")
    A("  s_endpgm")
    footer(L, 136 if stamps else 128, 96 if stamps else 64)
    s = "\n".join(L) + "\n"
    if stamps:
        s = s.replace("  v_and_b32 v0, 63, v0\n", "  v_and_b32 v0, 63, v0\n  v_mov_b32 v128, v1\n", 1)
    return s

if __name__ == "__main__":
    for a in sys.argv[1:]:
        name, _, kv = a.partition(":")
        kw = {}
        for x in kv.split(","):
            if not x: continue
            k, v = x.split("=")
            kw[k] = int(v)
        open(name, "w").write(gen(**kw))
```

```python
import sys, math, struct
from gen2 import header, footer, f2u, NAME

def gen(nt=1, stamps=0, N=20, it1=3, it2=6, trit=7, chkit=10, xit=19, lprio=3, light=0,
        da=-1, db=-1, dk=10, skew=0, bst=0, uo=2, vtouch=0, prog=0, kt=0, N2=28, vt0=0, N3=20, x0N=0, xmask=7, sel=-1, nsel=-1):
    L = []; A = L.append
    NT = " nt" if nt else ""
    W = 5
    def ST(i):
        if stamps and light and i == 4:
            A("  s_mov_b32 s72, 1")
        if stamps and (not light or i == 11):
            A("  s_memrealtime s[%d:%d]" % (64 + 2 * i, 65 + 2 * i))
            A("  s_waitcnt lgkmcnt(0)")
    SL = 65536
    QL = SL + 24576
    MT = SL + 32768
    header(L, "; @launch grid=(256,1,1) block=(320,1,1) lds=%d" % (MT + 256))
    A("  s_load_dwordx16 s[4:19], s[0:1], 0")
    A("  s_load_dwordx2 s[20:21], s[0:1], 64")
    A("  s_cmp_ge_u32 s2, 256")
    A("  s_cbranch_scc1 L_exit")
    if stamps:
        for i in range(1, 12):
            A("  s_mov_b64 s[%d:%d], 0" % (64 + 2 * i, 65 + 2 * i))
        A("  s_memrealtime s[64:65]")
    A("  v_lshrrev_b32 v1, 6, v0")
    A("  v_and_b32 v0, 63, v0")
    A("  v_readfirstlane_b32 s3, v1")
    A("  s_and_b32 s22, s2, 7")
    A("  s_lshr_b32 s23, s2, 5")
    A("  s_lshl3_add_u32 s22, s22, s23")
    A("  s_bfe_u32 s23, s2, 0x20003")
    A("  v_lshrrev_b32 v8, 4, v0")
    A("  v_and_b32 v9, 15, v0")
    A("  s_cmp_lg_u32 s3, 0")
    A("  s_cbranch_scc1 L_cons")
    if lprio:
        A("  s_setprio %d" % lprio)
    A("  v_xor_b32 v1, v9, v8")
    A("  v_lshlrev_b32 v1, 4, v1")
    A("  v_lshl_add_u32 v1, v8, 8, v1")
    A("  v_xor_b32 v2, 64, v1")
    A("  v_xor_b32 v3, 0x80, v1")
    A("  v_xor_b32 v4, 0xc0, v1")
    A("  s_lshl_b32 s56, s22, 20")
    A("  s_lshl_b32 s46, s23, 18")
    A("  s_mov_b32 s45, s46")
    A("  s_mov_b32 s26, 0x100000")
    A("  s_mov_b32 s27, 0x20000")
    A("  s_mov_b32 m0, 0")
    A("  v_lshlrev_b32 v5, 1, v8")
    A("  v_xor_b32 v5, v9, v5")
    A("  v_lshlrev_b32 v5, 4, v5")
    A("  v_lshl_add_u32 v5, v8, 8, v5")
    A("  v_xor_b32 v6, 0x80, v5")
    A("  s_mov_b32 s44, 0")
    A("  s_waitcnt lgkmcnt(0)")
    ST(1)
    A("  s_add_u32 s24, s6, s56")
    A("  s_addc_u32 s25, s7, 0")
    p = (N - 1) % 16
    assert 17 <= N <= 32
    def group(kind, Nw=None, first=True):
        Nw = Nw or N
        p = (Nw - 1) - 16
        assert 0 <= p < 16
        for u in range(4):
            for i in range(4):
                A("  s_waitcnt vmcnt(%d)" % (Nw - 1))
                if 4 * u + i == p:
                    if kind == "k" and first:
                        A("  s_cmp_lt_u32 s44, 2")
                        A("  s_cbranch_scc1 L_nobar")
                    if bst:
                        A("  s_memtime s[88:89]")
                        A("  s_waitcnt lgkmcnt(0)")
                    A("  s_barrier")
                    if bst:
                        A("  s_memtime s[90:91]")
                        A("  s_waitcnt lgkmcnt(0)")
                        A("  s_sub_u32 s88, s90, s88")
                        A("  s_cmp_lt_u32 s44, 6")
                        A("  s_cselect_b32 s89, s88, 0")
                        A("  s_add_u32 s74, s74, s89")
                        A("  s_add_u32 s76, s76, s88")
                        A("  s_max_u32 s78, s78, s88")
                    if kind == "k" and first:
                        A("L_nobar:")
                A("  buffer_load_dwordx4 v%d, s[24:27], s46 offen offset:%d%s lds" % ((1 + i) if kind == "k" else (5 + (i & 1)), 1024 * i, NT))
            if not uo:
                A("  s_add_u32 s46, s46, 0x1000")
            elif u < 3:
                if uo == 1:
                    A("  s_add_u32 s46, s46, 0x%x" % [0x1000, 0x7000, 0x1000][u])
                else:
                    A("  s_xor_b32 s46, s46, 0x%x" % [0x2000, 0x3000, 0x2000][u])
            A("  s_add_u32 m0, m0, 0x1000")
        A("  s_and_b32 m0, m0, 0xffff")
        A("  s_add_u32 s44, s44, 1")
        if prog:
            for gi, slot in ((8, 4), (14, 5), (16, 6), (18, 7), (20, 8), (24, 9)):
                if (gi <= 16) == (kind == "k") and (first or gi == 16 or gi == 18) and not (first and ((kt and gi == 16) or (vt0 and gi == 18))):
                    A("  s_cmp_eq_u32 s44, %d" % gi)
                    A("  s_cbranch_scc0 L_pg%d" % gi)
                    A("  s_memrealtime s[%d:%d]" % (64 + 2 * slot, 65 + 2 * slot))
                    A("L_pg%d:" % gi)
        if uo == 2:
            A("  s_brev_b32 s47, s44")
            A("  s_lshr_b32 s47, s47, 15")
            A("  s_and_b32 s47, s47, 0x1c000")
            A("  s_and_b32 s48, s44, 8")
            A("  s_lshl_b32 s48, s48, 14")
            A("  s_or_b32 s46, s45, s47")
            A("  s_or_b32 s46, s46, s48")
        if uo == 1:
            A("  s_and_b32 s47, s44, 5")
            A("  s_and_b32 s48, s44, 10")
            A("  s_mul_i32 s47, s47, 0x3000")
            A("  s_mul_i32 s48, s48, 0xc000")
            A("  s_and_b32 s47, s47, 0x6000")
            A("  s_and_b32 s48, s48, 0x30000")
            A("  s_or_b32 s46, s45, s47")
            A("  s_or_b32 s46, s46, s48")
    if x0N:
        A("  s_and_b32 s47, s2, %d" % xmask)
        A("  s_cbranch_scc1 L_lk")
        n0 = len(L)
        A("L_lk:")
        group("k", x0N)
        A("  s_cmp_lt_u32 s44, 16")
        A("  s_cbranch_scc1 L_lk")
        A("  s_add_u32 s24, s8, s56")
        A("  s_addc_u32 s25, s9, 0")
        A("L_lv:")
        group("v", x0N)
        A("  s_cmp_lt_u32 s44, 32")
        A("  s_cbranch_scc1 L_lv")
        L[n0:] = [x.replace("L_lk", "L_xk").replace("L_lv", "L_xv").replace("L_nobar", "L_xnobar") for x in L[n0:]]
        A("  s_branch L_ldrain")
    A("L_lk:")
    group("k")
    A("  s_cmp_lt_u32 s44, %d" % (16 - kt))
    A("  s_cbranch_scc1 L_lk")
    if kt:
        A("L_lk2:")
        group("k", N2, False)
        A("  s_cmp_lt_u32 s44, 16")
        A("  s_cbranch_scc1 L_lk2")
    A("  s_add_u32 s24, s8, s56")
    A("  s_addc_u32 s25, s9, 0")
    if not uo: A("  s_lshl_b32 s46, s23, 18")
    if vt0:
        A("L_lv0:")
        group("v", N3, False)
        A("  s_cmp_lt_u32 s44, %d" % (16 + vt0))
        A("  s_cbranch_scc1 L_lv0")
    A("L_lv:")
    group("v")
    A("  s_cmp_lt_u32 s44, 32")
    A("  s_cbranch_scc1 L_lv")
    A("L_ldrain:")
    ST(2)
    A("  s_waitcnt vmcnt(16)")
    A("  s_barrier")
    A("  s_waitcnt vmcnt(8)")
    A("  s_barrier")
    A("  s_waitcnt vmcnt(0)")
    if prog:
        A("  s_memrealtime s[70:71]")
        A("  s_waitcnt lgkmcnt(0)")
    ST(3)
    A("  s_barrier")
    A("  s_branch L_end" if stamps else "  s_endpgm")
    A("L_cons:")
    Q, S, PA, KF, SA, SB, VB, VA, ACC, PB = 12, 28, 36, 40, 40, 48, 64, 72, 80, 112
    A("  s_sub_u32 s3, s3, 1")
    A("  v_lshlrev_b32 v91, 4, v0")
    A("  s_lshl_b32 s59, s3, 11")
    A("  s_add_u32 s59, s59, %d" % QL)
    A("  s_lshl_b32 s57, s22, 11")
    A("  s_movk_i32 s34, 2048")
    A("  s_mov_b32 s35, 0x20000")
    A("  s_mov_b32 m0, s59")
    A("  v_xor_b32 v1, v8, v9")
    A("  v_lshlrev_b32 v1, 4, v1")
    A("  v_lshl_add_u32 v1, v9, 8, v1")
    A("  s_lshl_b32 s56, s3, 12")
    A("  v_add_u32 v1, s56, v1")
    A("  v_xor_b32 v2, 64, v1")
    A("  v_xor_b32 v3, 0x80, v1")
    A("  v_xor_b32 v4, 0xc0, v1")
    A("  v_bfe_u32 v5, v0, 2, 4")
    A("  v_and_b32 v6, 7, v5")
    A("  v_lshlrev_b32 v6, 1, v6")
    A("  v_bfe_u32 v7, v0, 1, 1")
    A("  s_lshl_b32 s56, s3, 2")
    A("  v_add_u32 v7, s56, v7")
    A("  v_xor_b32 v6, v6, v7")
    A("  v_lshlrev_b32 v6, 4, v6")
    A("  v_lshl_add_u32 v5, v5, 8, v6")
    A("  v_and_b32 v6, 1, v0")
    A("  v_lshl_add_u32 v5, v6, 3, v5")
    A("  v_xor_b32 v6, 32, v5")
    A("  v_and_b32 v7, 7, v0")
    A("  v_lshlrev_b32 v7, 8, v7")
    A("  v_lshlrev_b32 v10, 4, v8")
    A("  v_lshlrev_b32 v11, 3, v8")
    A("  s_lshl_b32 s56, s3, 6")
    A("  v_add_u32 v11, s56, v11")
    A("  v_bfe_u32 v93, v0, 3, 1")
    A("  v_lshl_add_u32 v11, v93, 5, v11")
    A("  v_add_u32 v93, v11, v7")
    A("  v_add3_u32 v7, v7, v10, s59")
    A("  v_and_b32 v0, 0x70, v91")
    A("  v_lshl_add_u32 v106, v8, 7, v0")
    A("  v_add_u32 v106, %d, v106" % SL)
    A("  s_lshl_b32 s56, s3, 9")
    A("  v_add_u32 v107, s56, v106")
    A("  v_lshlrev_b32 v95, 4, v9")
    A("  v_add_u32 v95, %d, v95" % MT)
    c = (128 ** -0.5) * math.log2(math.e)
    A("  s_mov_b32 s53, 0x%08x" % f2u(c))
    A("  s_mov_b32 s54, s53")
    A("  s_mov_b32 s55, s53")
    A("  v_mov_b32 v88, 0xff800000")
    A("  v_mov_b32 v89, 0")
    for i in range(4):
        A("  v_mov_b64 v[%d:%d], 0" % (ACC + 2 * i, ACC + 2 * i + 1))
    A("  v_mov_b32 v90, 0")
    A("  v_mov_b32 v92, 0")
    A("  s_waitcnt lgkmcnt(0)")
    A("  s_add_u32 s32, s4, s57")
    A("  s_addc_u32 s33, s5, 0")
    A("  buffer_load_dwordx4 v91, s[32:35], 0 offen lds")
    A("  buffer_load_dwordx4 v91, s[32:35], 0 offen offset:1024 lds")
    A("  s_lshl_b32 s56, s22, 15")
    A("  s_add_u32 s48, s20, s56")
    A("  s_addc_u32 s49, s21, 0")
    A("  s_mov_b32 s50, 0x8000")
    A("  s_mov_b32 s51, 0x20000")
    A("  s_mov_b32 s36, s18")
    A("  s_mov_b32 s37, s19")
    A("  s_movk_i32 s38, 256")
    A("  s_mov_b32 s39, 0x20000")
    A("  s_lshl_b32 s56, s22, 11")
    A("  s_add_u32 s40, s16, s56")
    A("  s_addc_u32 s41, s17, 0")
    A("  s_movk_i32 s42, 2048")
    A("  s_mov_b32 s43, 0x20000")
    A("  s_lshl_b32 s57, s3, 13")
    A("  s_lshl_b32 s56, s23, 11")
    A("  s_add_u32 s60, s56, s57")
    A("  s_lshl_b32 s57, s23, 13")
    for k in range(1, 4):
        A("  s_add_u32 s56, s23, %d" % k)
        A("  s_and_b32 s56, s56, 3")
        A("  s_lshl_b32 s56, s56, 11")
        A("  s_add_u32 s%d, s56, s57" % (60 + k))
    A("  s_add_u32 s24, s20, 0x200000")
    A("  s_addc_u32 s25, s21, 0")
    A("  s_mov_b32 s26, 0x20000")
    A("  s_mov_b32 s27, 0x20000")
    A("  s_lshl_b32 s28, s22, 8")
    A("  s_lshl3_add_u32 s28, s3, s28")
    A("  s_add_u32 s28, s28, 0x10000")
    A("  s_getreg_b32 s30, hwreg(HW_REG_XCC_ID, 0, 4)")
    A("  s_cmp_eq_u32 s3, s23")
    A("  s_cselect_b32 s31, 0, 2")
    A("  s_cselect_b32 s29, %d, -1" % trit)
    A("  s_cselect_b32 s46, %d, -1" % (trit + 3))
    A("  s_xor_b32 s56, s3, 3")
    A("  s_or_b32 s56, s56, s2")
    A("  s_cselect_b32 s44, -1, %d" % it1)
    A("  s_cselect_b32 s45, -1, %d" % it2)
    A("  s_cbranch_scc1 L_notag0")
    A("  buffer_load_dword v94, v92, s[24:27], 0 offen sc1")
    A("L_notag0:")
    ev = [it1, it2, trit, trit + 3, chkit, chkit + 4, 16, xit, xit + 3, 31]
    assert trit + 3 < 16 and it2 < chkit and chkit + 4 < xit
    A("  s_mov_b32 s58, 0x%x" % sum(1 << e for e in set(ev)))
    A("  s_mov_b32 s47, 0")
    A("  s_mov_b32 s52, 0")
    if vtouch:
        A("  s_mov_b32 s32, s8")
        A("  s_mov_b32 s33, s9")
    A("  s_mov_b32 s8, 0x00ff00ff")
    A("  s_mov_b32 s9, 0x00ff00ff")
    A("  s_barrier")
    ST(4)
    for j in range(4):
        A("  ds_read_b128 v[%d:%d], v%d" % (KF + 4 * j, KF + 3 + 4 * j, 1 + j))
    A("  s_waitcnt vmcnt(0)")
    for j in range(4):
        A("  ds_read_b128 v[%d:%d], v7 offset:%d" % (Q + 4 * j, Q + 3 + 4 * j, 64 * j))
    A("  s_waitcnt lgkmcnt(0)")
    A("  s_branch L_kq")
    A("L_kloop:")
    A("  s_barrier")
    for j in range(4):
        A("  ds_read_b128 v[%d:%d], v%d" % (KF + 4 * j, KF + 3 + 4 * j, 100 + j))
    A("L_kq:")
    for j in range(4):
        cc = "0" if j == 0 else "v[%d:%d]" % (S, S + 3)
        A("  s_waitcnt lgkmcnt(%d)" % (3 - j))
        A("  v_mfma_f32_16x16x32_bf16 v[%d:%d], v[%d:%d], v[%d:%d], %s" % (S, S + 3, KF + 4 * j, KF + 3 + 4 * j, Q + 4 * j, Q + 3 + 4 * j, cc))
    A("  s_add_u32 s52, s52, 0x4000")
    A("  s_and_b32 s52, s52, 0xffff")
    A("  s_add_u32 s47, s47, 1")
    for k in range(4):
        A("  v_add_u32 v%d, s52, v%d" % (100 + k, 1 + k))
    A("  s_mov_b64 exec, s[8:9]")
    A("  ds_write_b128 v107, v[%d:%d]" % (S, S + 3))
    A("  s_mov_b64 exec, -1")
    A("  v_max3_f32 v88, v88, v%d, v%d" % (S, S + 1))
    A("  v_max3_f32 v88, v88, v%d, v%d" % (S + 2, S + 3))
    A("  v_add_u32 v107, 0x800, v107")
    A("  s_bitcmp1_b32 s58, s47")
    A("  s_cbranch_scc0 L_kloop")
    A("  s_cmp_eq_u32 s47, 16")
    A("  s_cbranch_scc0 L_events")
    A("  v_mul_f32 v88, s53, v88")
    A("  s_lshl_b32 s56, s3, 2")
    A("  v_mov_b32 v9, v88")
    A("  v_add_u32 v8, s56, v95")
    A("  v_mov_b32 v104, v5")
    A("  v_permlane32_swap_b32 v88, v9")
    A("  v_max_f32 v88, v88, v9")
    A("  v_mov_b32 v9, v88")
    A("  v_mov_b32 v105, v6")
    A("  s_nop 0")
    A("  v_permlane16_swap_b32 v88, v9")
    A("  v_max_f32 v88, v88, v9")
    A("  ds_write_b32 v8, v88")
    A("  s_waitcnt lgkmcnt(0)")
    A("  s_barrier")
    A("  ds_read_b128 v[%d:%d], v95" % (S, S + 3))
    def sreads():
        for k in range(4):
            A("  ds_read_b128 v[%d:%d], v106 offset:%d" % (SA + 4 * k, SA + 3 + 4 * k, 512 * k))
        A("  v_add_u32 v106, 0x800, v106")
    def pcomp(Sx, Pd):
        for i in range(0, 8, 2):
            A("  v_pk_fma_f32 v[%d:%d], v[%d:%d], s[54:55], v[88:89] op_sel_hi:[1,1,0] neg_lo:[0,0,1] neg_hi:[0,0,1]" % (Sx + i, Sx + i + 1, Sx + i, Sx + i + 1))
        for i in range(8):
            A("  v_exp_f32 v%d, v%d" % (Sx + i, Sx + i))
        for m in range(4):
            A("  v_cvt_pk_bf16_f32 v%d, v%d, v%d" % (Pd + m, Sx + 2 * m, Sx + 1 + 2 * m))
    def lsum():
        A("  v_pk_add_f32 v[%d:%d], v[%d:%d], v[%d:%d]" % (SA, SA + 1, SA, SA + 1, SA + 2, SA + 3))
        A("  v_pk_add_f32 v[%d:%d], v[%d:%d], v[%d:%d]" % (SA + 4, SA + 5, SA + 4, SA + 5, SA + 6, SA + 7))
        A("  v_pk_add_f32 v[%d:%d], v[%d:%d], v[%d:%d]" % (SB, SB + 1, SB, SB + 1, SB + 2, SB + 3))
        A("  v_pk_add_f32 v[%d:%d], v[%d:%d], v[%d:%d]" % (SB + 4, SB + 5, SB + 4, SB + 5, SB + 6, SB + 7))
        A("  v_pk_add_f32 v[%d:%d], v[%d:%d], v[%d:%d]" % (SA, SA + 1, SA, SA + 1, SA + 4, SA + 5))
        A("  v_pk_add_f32 v[%d:%d], v[%d:%d], v[%d:%d]" % (SB, SB + 1, SB, SB + 1, SB + 4, SB + 5))
        A("  v_pk_add_f32 v[%d:%d], v[%d:%d], v[%d:%d]" % (SA, SA + 1, SA, SA + 1, SB, SB + 1))
        A("  v_add_f32 v89, v89, v%d" % SA)
        A("  v_add_f32 v89, v89, v%d" % (SA + 1))
    sreads()
    A("  s_waitcnt lgkmcnt(4)")
    A("  v_max3_f32 v88, v%d, v%d, v%d" % (S, S + 1, S + 2))
    A("  v_max_f32 v88, v88, v%d" % (S + 3))
    A("  s_waitcnt lgkmcnt(2)")
    pcomp(SA, PA)
    A("  s_waitcnt lgkmcnt(0)")
    pcomp(SB, PB)
    lsum()
    A("  s_branch L_vbody")
    def trreads(V, off):
        A("  ds_read_b64_tr_b16 v[%d:%d], v104 offset:%d" % (V, V + 1, off))
        A("  ds_read_b64_tr_b16 v[%d:%d], v104 offset:%d" % (V + 2, V + 3, off + 4096))
        A("  ds_read_b64_tr_b16 v[%d:%d], v105 offset:%d" % (V + 4, V + 5, off))
        A("  ds_read_b64_tr_b16 v[%d:%d], v105 offset:%d" % (V + 6, V + 7, off + 4096))
    def pv(V, Pr, n):
        A("  s_waitcnt lgkmcnt(%d)" % (n + 2))
        A("  v_mfma_f32_16x16x32_bf16 v[%d:%d], v[%d:%d], v[%d:%d], v[%d:%d]" % (ACC, ACC + 3, V, V + 3, Pr, Pr + 3, ACC, ACC + 3))
        A("  s_waitcnt lgkmcnt(%d)" % n)
        A("  v_mfma_f32_16x16x32_bf16 v[%d:%d], v[%d:%d], v[%d:%d], v[%d:%d]" % (ACC + 4, ACC + 7, V + 4, V + 7, Pr, Pr + 3, ACC + 4, ACC + 7))
    A("L_vloop:")
    A("  s_barrier")
    A("L_vbody:")
    trreads(VA, 0)
    trreads(VB, 0x2000)
    sreads()
    A("  s_add_u32 s52, s52, 0x4000")
    A("  s_and_b32 s52, s52, 0xffff")
    A("  s_add_u32 s47, s47, 1")
    A("  v_add_u32 v104, s52, v5")
    A("  v_add_u32 v105, s52, v6")
    pv(VA, PA, 8)
    pv(VB, PB, 4)
    A("  s_waitcnt lgkmcnt(2)")
    pcomp(SA, PA)
    A("  s_waitcnt lgkmcnt(0)")
    pcomp(SB, PB)
    lsum()
    A("  s_bitcmp1_b32 s58, s47")
    A("  s_cbranch_scc0 L_vloop")
    A("  s_cmp_eq_u32 s47, 31")
    A("  s_cbranch_scc1 L_final")
    A("L_events:")
    A("  s_cmp_eq_u32 s47, s44")
    A("  s_cbranch_scc0 L_not1")
    A("  s_waitcnt vmcnt(0)")
    A("  v_add_u32 v94, 1, v94")
    A("  v_max_u32 v94, 1, v94")
    A("  s_mov_b64 exec, 1")
    A("  buffer_store_dword v94, v92, s[24:27], 0 offen sc1")
    A("  s_mov_b64 exec, -1")
    A("L_not1:")
    A("  s_cmp_eq_u32 s47, s45")
    A("  s_cbranch_scc0 L_not2")
    A("  s_waitcnt vmcnt(0)")
    A("  s_mov_b64 exec, 1")
    if skew:
        A("  v_mov_b32 v9, s64")
        A("  buffer_store_dword v9, v92, s[36:39], 0 offen offset:4 sc1")
    A("  buffer_store_dword v94, v92, s[36:39], 0 offen sc1")
    A("  s_mov_b64 exec, -1")
    A("L_not2:")
    A("  s_cmp_eq_u32 s47, s29")
    A("  s_cbranch_scc0 L_notr1")
    A("  s_lshl_b32 s57, s22, 8")
    A("  s_add_u32 s4, s10, s57")
    A("  s_addc_u32 s5, s11, 0")
    A("  s_movk_i32 s6, 256")
    A("  s_mov_b32 s7, 0x20000")
    TK = [56, 60, 64, 68]
    for j in range(4):
        A("  buffer_load_dwordx4 v[%d:%d], v10, s[4:7], 0 offen offset:%d" % (TK[j], TK[j] + 3, 64 * j))
    A("  s_add_u32 s4, s12, s57")
    A("  s_addc_u32 s5, s13, 0")
    A("  s_lshr_b32 s57, s22, 2")
    A("  buffer_load_dwordx2 v[120:121], v11, s[4:7], 0 offen")
    A("  s_mov_b32 s4, s14")
    A("  s_mov_b32 s5, s15")
    A("  s_movk_i32 s6, 32")
    A("  s_lshl_b32 s57, s57, 1")
    A("  buffer_load_ushort v122, v92, s[4:7], s57 offen")
    if vtouch:
        A("  s_lshl_b32 s57, s22, 20")
        A("  s_add_u32 s4, s62v, s57".replace("s62v", "s32"))
        A("  s_addc_u32 s5, s33, 0")
        A("  s_mov_b32 s6, 0x100000")
        A("  s_lshl_b32 s57, s23, 18")
        A("  buffer_load_dword v123, v92, s[4:7], s57 offen nt")
    A("L_notr1:")
    A("  s_cmp_eq_u32 s47, s46")
    A("  s_cbranch_scc0 L_notr2")
    A("  s_waitcnt vmcnt(0)")
    for j in range(4):
        cc = "0" if j == 0 else "v[124:127]"
        A("  v_mfma_f32_16x16x32_bf16 v[124:127], v[%d:%d], v[%d:%d], %s" % (TK[j], TK[j] + 3, Q + 4 * j, Q + 3 + 4 * j, cc))
    A("  v_lshlrev_b32 v122, 16, v122")
    A("  v_sub_f32 v122, 1.0, v122")
    A("  v_mul_f32 v122, 0x%08x, v122" % f2u(-1e9 * math.log2(math.e)))
    A("  v_and_b32 v119, 0xffff0000, v120")
    A("  v_lshlrev_b32 v118, 16, v120")
    A("  v_lshlrev_b32 v120, 16, v121")
    A("  v_and_b32 v121, 0xffff0000, v121")
    A("  s_nop 1")
    A("  v_fma_f32 v122, v124, s53, v122")
    A("L_notr2:")
    A("  s_cmp_eq_u32 s47, %d" % chkit)
    A("  s_cbranch_scc0 L_nochk")
    A("  buffer_load_dword v90, v92, s[36:39], 0 offen sc1")
    A("L_nochk:")
    A("  s_cmp_eq_u32 s47, %d" % (chkit + 4))
    A("  s_cbranch_scc0 L_tagdone")
    A("  s_mov_b32 s57, 0x200000")
    A("L_tagspin:")
    A("  s_waitcnt vmcnt(0)")
    A("  v_readfirstlane_b32 s59, v90")
    A("  s_cmp_lg_u32 s59, 0")
    A("  s_cbranch_scc1 L_tagok")
    A("  buffer_load_dword v90, v92, s[36:39], 0 offen sc1")
    A("  s_sub_u32 s57, s57, 1")
    A("  s_cbranch_scc0 L_tagspin")
    A("L_tagok:")
    A("  s_cmp_lg_u32 s31, 0")
    A("  s_cbranch_scc1 L_tagdone")
    A("  v_mov_b32 v8, v90")
    A("  v_mov_b32 v9, s30")
    A("  s_mov_b64 exec, 1")
    A("  buffer_store_dwordx2 v[8:9], v92, s[24:27], s28 offen sc1")
    A("  s_mov_b64 exec, -1")
    A("L_tagdone:")
    A("  s_cmp_eq_u32 s47, %d" % xit)
    A("  s_cbranch_scc0 L_nox1")
    A("  buffer_load_dwordx2 v[100:101], v92, s[24:27], s28 offen sc1")
    A("L_nox1:")
    A("  s_cmp_eq_u32 s47, %d" % (xit + 3))
    A("  s_cbranch_scc0 L_nox2")
    A("  s_waitcnt vmcnt(0)")
    A("  v_readfirstlane_b32 s57, v100")
    A("  v_readfirstlane_b32 s56, v101")
    A("  s_xor_b32 s57, s57, s59")
    A("  s_xor_b32 s56, s56, s30")
    A("  s_or_b32 s57, s57, s56")
    A("  s_cbranch_scc1 L_nox2")
    A("  s_lshr_b32 s31, s31, 1")
    A("L_nox2:")
    A("  s_cmp_lt_u32 s47, 16")
    A("  s_cbranch_scc1 L_kloop")
    A("  s_branch L_vloop")
    A("L_final:")
    A("  v_mov_b32 v9, v89")
    A("  v_mov_b32 v108, v88")
    A("  v_mov_b32 v99, v90")
    A("  v_permlane32_swap_b32 v89, v9")
    A("  v_add_f32 v89, v89, v9")
    A("  v_mov_b32 v9, v89")
    A("  v_mov_b32 v110, v90")
    A("  s_mov_b32 s57, 0x200000")
    A("  v_permlane16_swap_b32 v89, v9")
    A("  v_add_f32 v109, v89, v9")
    def spoll():
        for k in range(3):
            A("  buffer_load_dwordx4 v[%d:%d], v0, s[48:51], s%d offen offset:1024 sc1" % (24 + 4 * k, 27 + 4 * k, 61 + k))
    def opoll():
        for k in range(3):
            A("  buffer_load_dwordx4 v[%d:%d], v91, s[48:51], s%d offen sc1" % (12 + 4 * k, 15 + 4 * k, 61 + k))
    def chk(a, b, c_, ok):
        A("  v_xor_b32 v8, v%d, v90" % a)
        A("  v_xor_b32 v9, v%d, v90" % b)
        A("  v_xor_b32 v10, v%d, v90" % c_)
        A("  v_or3_b32 v8, v8, v9, v10")
        A("  v_cmp_ne_u32 vcc, 0, v8")
        A("  s_cbranch_vccz %s" % ok)
    A("  s_cmp_eq_u32 s31, 1")
    A("  s_cbranch_scc0 L_fin2")
    A("  s_mov_b64 exec, 0xff")
    A("  buffer_store_dwordx4 v[108:111], v0, s[48:51], s60 offen offset:1024")
    A("  s_mov_b64 exec, -1")
    A("L_fin3:")
    A("  s_barrier")
    trreads(VA, 0)
    A("  s_mov_b32 s4, 0x07060501")
    A("  s_mov_b32 s5, 0x07060502")
    A("  s_mov_b32 s6, 0x07060503")
    A("  s_mov_b32 vcc_lo, 0xff00ff00")
    A("  s_mov_b32 vcc_hi, 0xff00ff00")
    A("  s_cmp_eq_u32 s31, 1")
    pv(VA, PA, 0)
    ST(6)
    A("  s_barrier")
    trreads(VB, 0x2000)
    pv(VB, PB, 0)
    A("  s_nop 7")
    for r, d in [(3, 111), (0, 96), (1, 97), (2, 98)]:
        A("  v_cndmask_b32 v%d, v%d, v%d, vcc" % (d, ACC + r, ACC + 4 + r))
    A("  s_cbranch_scc0 L_other")
    def pack():
        for r in range(3):
            A("  v_perm_b32 v%d, v%d, v111, s%d" % (96 + r, 96 + r, 4 + r))
    pack()
    A("  buffer_store_dwordx4 v[96:99], v91, s[48:51], s60 offen")
    ST(9)
    A("  s_branch L_end" if stamps else "  s_endpgm")
    A("L_other:")
    A("  s_cmp_eq_u32 s31, 0")
    A("  s_cbranch_scc1 L_consume")
    pack()
    A("  buffer_store_dwordx4 v[96:99], v91, s[48:51], s60 offen sc1")
    ST(9)
    A("  s_branch L_end" if stamps else "  s_endpgm")
    A("L_fin2:")
    A("  s_cmp_eq_u32 s31, 0")
    A("  s_cbranch_scc1 L_fin4")
    A("  s_mov_b64 exec, 0xff")
    A("  buffer_store_dwordx4 v[108:111], v0, s[48:51], s60 offen offset:1024 sc1")
    A("  s_mov_b64 exec, -1")
    A("  s_branch L_fin3")
    A("L_fin4:")
    spoll()
    opoll()
    A("  v_max_f32 v8, v108, v122")
    A("  v_sub_f32 v123, v108, v8")
    A("  v_sub_f32 v122, v122, v8")
    A("  v_exp_f32 v123, v123")
    A("  v_exp_f32 v122, v122")
    A("  v_mov_b32 v108, v8")
    A("  v_fma_f32 v109, v109, v123, v122")
    for r in range(4):
        A("  v_mul_f32 v%d, v122, v%d" % (118 + r, 118 + r))
    A("  s_branch L_fin3")
    A("L_consume:")
    for r, d in enumerate([96, 97, 98, 111]):
        A("  v_fma_f32 v%d, v%d, v123, v%d" % (96 + r, d, 118 + r))
    ST(9)
    A("  s_mov_b32 s4, 0x04000c0c")
    A("  s_mov_b32 s5, 0x0706000c")
    A("L_spoll:")
    A("  s_waitcnt vmcnt(0)")
    chk(26, 30, 34, "L_sok")
    spoll()
    A("  s_sub_u32 s57, s57, 1")
    A("  s_cbranch_scc0 L_spoll")
    A("  s_waitcnt vmcnt(0)")
    A("L_sok:")
    chk(15, 19, 23, "L_noo")
    opoll()
    A("L_noo:")
    A("  v_max3_f32 v8, v108, v24, v28")
    A("  v_max_f32 v8, v8, v32")
    A("  v_sub_f32 v108, v108, v8")
    for k in range(3):
        A("  v_sub_f32 v%d, v%d, v8" % (24 + 4 * k, 24 + 4 * k))
    A("  v_exp_f32 v108, v108")
    for k in range(3):
        A("  v_exp_f32 v%d, v%d" % (24 + 4 * k, 24 + 4 * k))
    A("  v_mul_f32 v109, v108, v109")
    for k in range(3):
        A("  v_fmac_f32 v109, v%d, v%d" % (24 + 4 * k, 25 + 4 * k))
    A("  v_rcp_f32 v109, v109")
    A("  s_mov_b32 s57, 0x200000")
    A("  v_mul_f32 v108, v108, v109")
    for k in range(3):
        A("  v_mul_f32 v%d, v%d, v109" % (24 + 4 * k, 24 + 4 * k))
    A("  v_pk_mul_f32 v[96:97], v[96:97], v[108:109] op_sel_hi:[1,0]")
    A("  v_pk_mul_f32 v[98:99], v[98:99], v[108:109] op_sel_hi:[1,0]")
    A("L_opoll:")
    A("  s_waitcnt vmcnt(0)")
    chk(15, 19, 23, "L_ook")
    opoll()
    A("  s_sub_u32 s57, s57, 1")
    A("  s_cbranch_scc0 L_opoll")
    A("  s_waitcnt vmcnt(0)")
    A("L_ook:")
    ST(10)
    for k in range(3):
        b = 12 + 4 * k
        A("  v_perm_b32 v%d, v%d, v%d, s4" % (b + 3, b + 2, b + 1))
    for k in range(3):
        b = 12 + 4 * k
        A("  v_pk_fma_f32 v[96:97], v[%d:%d], v[%d:%d], v[96:97] op_sel_hi:[1,0,1]" % (b, b + 1, 24 + 4 * k, 25 + 4 * k))
        A("  v_perm_b32 v%d, v%d, v%d, s5" % (b + 3, b + 3, b))
    for k in range(3):
        b = 12 + 4 * k
        A("  v_pk_fma_f32 v[98:99], v[%d:%d], v[%d:%d], v[98:99] op_sel_hi:[1,0,1]" % (b + 2, b + 3, 24 + 4 * k, 25 + 4 * k))
    A("  v_cvt_pk_bf16_f32 v96, v96, v97")
    A("  v_cvt_pk_bf16_f32 v97, v98, v99")
    A("  buffer_store_dwordx2 v[96:97], v93, s[40:43], 0 offen")
    if stamps:
        A("L_end:")
        A("  s_waitcnt vmcnt(0)")
        ST(11)
        if da >= 0:
            if skew:
                if sel >= 0:
                    A("  s_and_b32 s56, s2, 7")
                    A("  s_cmp_lg_u32 s56, %d" % sel)
                    A("  s_cbranch_scc1 L_exit")
                if nsel >= 0:
                    A("  s_and_b32 s56, s2, 7")
                    A("  s_cmp_eq_u32 s56, %d" % nsel)
                    A("  s_cbranch_scc1 L_exit")
                A("  s_cmp_eq_u32 s72, 0")
                A("  s_cbranch_scc1 L_exit")
                A("  buffer_load_dword v9, v92, s[36:39], 0 offen offset:4 sc1")
                A("  s_waitcnt vmcnt(0)")
                A("  v_readfirstlane_b32 s57, v9")
                if skew == 1:
                    A("  s_sub_u32 s56, s%d, s57" % (64 + 2 * db))
                else:
                    A("  s_sub_u32 s56, s57, s%d" % (64 + 2 * db))
                A("  s_max_i32 s56, s56, 0")
                A("  s_add_u32 s%d, s%d, s56" % (64 + 2 * 8, 64 + 2 * da))
                db = 8
            A("  s_cmp_eq_u32 s%d, 0" % (64 + 2 * da))
            A("  s_cbranch_scc1 L_exit")
            A("  s_cmp_eq_u32 s%d, 0" % (64 + 2 * db))
            A("  s_cbranch_scc1 L_exit")
            A("  s_sub_u32 s56, s%d, s%d" % (64 + 2 * db, 64 + 2 * da))
            A("  s_min_u32 s56, s56, 5000")
            A("  s_mul_i32 s56, s56, %d" % dk)
            A("L_dspin:")
            A("  s_memrealtime s[58:59]")
            A("  s_waitcnt lgkmcnt(0)")
            A("  s_sub_u32 s57, s58, s86")
            A("  s_cmp_lt_u32 s57, s56")
            A("  s_cbranch_scc1 L_dspin")
        else:
            A("  s_add_u32 s24, s20, 0x8000000")
            A("  s_addc_u32 s25, s21, 0")
            A("  s_mov_b32 s26, 0x100000")
            A("  s_mov_b32 s27, 0x20000")
            A("  s_getreg_b32 s58, hwreg(HW_REG_HW_ID)")
            A("  s_mul_i32 s56, s2, %d" % W)
            A("  v_readfirstlane_b32 s57, v128")
            A("  s_add_u32 s56, s56, s57")
            A("  s_lshl_b32 s56, s56, 7")
            A("  s_mov_b64 exec, 1")
            A("  v_mov_b32 v1, 0")
            for i in range(12):
                A("  v_mov_b32 v2, s%d" % (64 + 2 * i))
                A("  v_mov_b32 v3, s%d" % (65 + 2 * i))
                A("  buffer_store_dwordx2 v[2:3], v1, s[24:27], s56 offen offset:%d" % (8 * i))
                A("  s_nop 1")
            A("  s_getreg_b32 s57, hwreg(HW_REG_XCC_ID)")
            A("  v_mov_b32 v2, s57")
            A("  v_mov_b32 v3, s58")
            A("  buffer_store_dwordx2 v[2:3], v1, s[24:27], s56 offen offset:120")
    A("L_exit:")
    A("  s_endpgm")
    footer(L, 136 if stamps else 128, 96 if stamps else 64)
    s = "\n".join(L) + "\n"
    if stamps:
        s = s.replace("  v_and_b32 v0, 63, v0\n", "  v_and_b32 v0, 63, v0\n  v_mov_b32 v128, v1\n", 1)
    return s

if __name__ == "__main__":
    for a in sys.argv[1:]:
        name, _, kv = a.partition(":")
        kw = {}
        for x in kv.split(","):
            if not x: continue
            k, v = x.split("=")
            kw[k] = int(v)
        open(name, "w").write(gen(**kw))
```
